```python
import torch

def _softmax(x, axis=-1):
    return torch.softmax(x, dim=axis)
def _gelu(x):
    return torch.nn.functional.gelu(x, approximate="tanh")
def _silu(x):
    return torch.nn.functional.silu(x)
def _sigmoid(x):
    return torch.sigmoid(x)
def _layernorm(x, axis=-1, eps=1e-5):
    m = x.mean(dim=axis, keepdim=True)
    v = x.var(dim=axis, keepdim=True, unbiased=False)
    return (x - m) / torch.sqrt(v + eps)
def _scatter_add(tgt, idx, src, axis=0):
    return tgt.clone().index_add_(axis, idx, src)
def _segment_sum(src, seg, n):
    out = torch.zeros((n,) + src.shape[1:], dtype=src.dtype)
    return out.index_add_(0, seg, src)
def _pad(x, pw):
    flat = tuple(v for pair in reversed(pw) for v in pair)
    return torch.nn.functional.pad(x, flat)

kernel_name = 'concat_heads__gqa_block_cached__sliding_block_cached__decode'

def setup_inputs():

    _w = (lambda a: (lambda t: t.to(torch.bfloat16) if t.is_floating_point() else t)(torch.as_tensor(a)))
    def _A_setup():
        B, Sq, D = 1, 1, 640
        Hq, Hkv, Sk, Dh = 32, 32, 4096, 128
        assert Hq % Hkv == 0, (Hq, Hkv)
        return {
            "x": _w((lambda *s: torch.randn(*s, dtype=torch.bfloat16) * 3.2)(B, Sq, D)),
            "k_cache": _w((lambda *s: torch.randn(*s, dtype=torch.bfloat16) * 6.4)(B, Hkv, Sk, Dh)),
            "v_cache": _w((lambda *s: torch.randn(*s, dtype=torch.bfloat16) * 0.1)(B, Hkv, Sk, Dh)),
            "wq": _w((lambda *s: torch.randn(*s, dtype=torch.bfloat16) * 6.4)(D, Hq * Dh) * (D ** -0.5)),
            "wo": _w((lambda *s: torch.randn(*s, dtype=torch.bfloat16) * 0.1)(Hq * Dh, D) * ((Hq * Dh) ** -0.5)),
        }
    _A_in = _A_setup()

    def _B_setup():
        B, Sq, D = 1, 1, 640
        Hq, Hkv, Sk, Dh = 32, 32, 4096, 128
        assert Hq % Hkv == 0, (Hq, Hkv)
        return {
            "x": _w((lambda *s: torch.randn(*s, dtype=torch.bfloat16) * 1.6)(B, Sq, D)),
            "k_cache": _w((lambda *s: torch.randn(*s, dtype=torch.bfloat16) * 3.2)(B, Hkv, Sk, Dh)),
            "v_cache": _w((lambda *s: torch.randn(*s, dtype=torch.bfloat16) * 0.1)(B, Hkv, Sk, Dh)),
            "wq": _w((lambda *s: torch.randn(*s, dtype=torch.bfloat16) * 3.2)(D, Hq * Dh) * (D ** -0.5)),
            "wo": _w((lambda *s: torch.randn(*s, dtype=torch.bfloat16) * 0.1)(Hq * Dh, D) * ((Hq * Dh) ** -0.5)),
        }
    _B_in = _B_setup()

    return {
        "A_x": _A_in["x"],
        "A_k_cache": _A_in["k_cache"],
        "A_v_cache": _A_in["v_cache"],
        "A_wq": _A_in["wq"],
        "A_wo": _A_in["wo"],
        "B_x": _B_in["x"],
        "B_k_cache": _B_in["k_cache"],
        "B_v_cache": _B_in["v_cache"],
        "B_wq": _B_in["wq"],
        "B_wo": _B_in["wo"],
    }

def reference(A_x, A_k_cache, A_v_cache, A_wq, A_wo, B_x, B_k_cache, B_v_cache, B_wq, B_wo):
    def _A_ref(x, k_cache, v_cache, wq, wo):
        B, Sq, D = x.shape
        Hq, Dh = 32, 128
        Hkv = k_cache.shape[1]
        rep = Hq // Hkv
        q = (lambda x, *d: x.permute(*d))((x @ wq).reshape(B, Sq, Hq, Dh), 0, 2, 1, 3)
        k = (lambda x, n, axis: torch.repeat_interleave(x, n, dim=axis))(k_cache, rep, axis=1)
        v = (lambda x, n, axis: torch.repeat_interleave(x, n, dim=axis))(v_cache, rep, axis=1)
        scores = torch.einsum("bhqd,bhkd->bhqk", q, k) * (Dh ** -0.5)
        p = _softmax(scores, axis=-1)
        o = torch.einsum("bhqk,bhkd->bhqd", p, v)
        return (lambda x, *d: x.permute(*d))(o, 0, 2, 1, 3).reshape(B, Sq, Hq * Dh) @ wo

    def _B_ref(x, k_cache, v_cache, wq, wo):
        B, Sq, D = x.shape
        Hq, Dh = 32, 128
        Hkv, Sk = k_cache.shape[1], k_cache.shape[2]
        W = min(4096, max(256, Sk // 4))
        rep = Hq // Hkv
        q = (lambda x, *d: x.permute(*d))((x @ wq).reshape(B, Sq, Hq, Dh), 0, 2, 1, 3)
        k = (lambda x, n, axis: torch.repeat_interleave(x, n, dim=axis))(k_cache[:, :, Sk - W:, :], rep, axis=1)
        v = (lambda x, n, axis: torch.repeat_interleave(x, n, dim=axis))(v_cache[:, :, Sk - W:, :], rep, axis=1)
        scores = torch.einsum("bhqd,bhkd->bhqk", q, k) * (Dh ** -0.5)
        p = _softmax(scores, axis=-1)
        o = torch.einsum("bhqk,bhkd->bhqd", p, v)
        return (lambda x, *d: x.permute(*d))(o, 0, 2, 1, 3).reshape(B, Sq, Hq * Dh) @ wo

    a = _A_ref(A_x, A_k_cache, A_v_cache, A_wq, A_wo)
    b = _B_ref(B_x, B_k_cache, B_v_cache, B_wq, B_wo)
    return torch.concatenate([a, b], axis=-1)
```

```python
NAME = "concat_heads__gqa_block_cached__sliding_block_cached__decode"

HEADER = """; Kernarg layout for this problem (104 bytes, ptrs only, base s[0:1]):
"""

class Asm:
    def __init__(self):
        self.lines = []
        self.nlabel = 0
    def __call__(self, s=""):
        for l in s.split("\n"):
            self.lines.append("    " + l.strip() if l.strip() and not l.strip().endswith(":") else l.strip())
    def c(self, s):
        self.lines.append("    ; " + s)
    def label(self, name):
        self.lines.append(name + ":")
    def newlabel(self, base="L"):
        self.nlabel += 1
        return f"{base}_{self.nlabel}"
    def text(self):
        return "\n".join(self.lines) + "\n"

def kernel_text(name, body, vgpr, sgpr, accum=None):
    if accum is None:
        accum = (vgpr + 3) // 4 * 4
    return (f".globl {name}\n.p2align 8\n.type {name},@function\n{name}:\n" + body +
            f""".section .rodata,"a"
.p2align 6
.amdhsa_kernel {name}
  .amdhsa_next_free_vgpr {vgpr}
  .amdhsa_next_free_sgpr {sgpr}
  .amdhsa_accum_offset {accum}
  .amdhsa_group_segment_fixed_size 0
  .amdhsa_kernarg_size 104
  .amdhsa_user_sgpr_count 2
  .amdhsa_user_sgpr_kernarg_segment_ptr 1
  .amdhsa_system_sgpr_workgroup_id_x 1
  .amdhsa_float_denorm_mode_32 3
.end_amdhsa_kernel
.text
""")

def file_text(launches, kernels):
    s = HEADER
    if len(launches) == 1 and launches[0][0] == NAME + "_kernel":
        k, g, b, lds = launches[0]
        s += f"; @launch grid=({g},1,1) block=({b},1,1) lds={lds}\n"
    else:
        for k, g, b, lds in launches:
            s += f"; @launch kernel={k} grid=({g},1,1) block=({b},1,1) lds={lds}\n"
    s += '.amdgcn_target "amdgcn-amd-amdhsa--gfx950"\n.text\n'
    for k in kernels:
        s += k
    return s
```

```python
import sys
from asmgen import *

STAMPS = False
NT = "nt"
SPIN_MAX = 400000

sW = 3
sH = 4
sJ = 5
sT0, sT1, sT2, sT3 = 6, 7, 8, 9
sNT = 10
sB4, sB5 = 11, 12
sTAG = 13
sSPIN = 14
sBLK = 15
SRD_X = 44; SRD_WQ = 48; SRD_K = 52; SRD_V = 56; SRD_WO = 60; SRD_R1 = 64; SRD_R2 = 68; SRD_OUT = 72
sOFF = 76
sM = 82; sL = 83
sMASK = 84
sNTILE2 = 92
sWO2 = 93
sPERM = 94
sSTAMP = 96
sEXEC = 42

vLane = 0
vLin = 1; vKoff = 2; vWq = 3; vWo = 4
vMask = 5
vT = 9
W = 16
K = 96
Q = 192
X = 224

LDS_QACC = 0
LDS_OACC = 512
LDS_ML = 1536
LDS_OPART = 2048
LDS_OHL = 6144
LDS_BYTES = 8192

WS_R1 = 4096
WS_R2 = 1 << 20

def stamp(a, idx):
    if STAMPS:
        a(f"s_memrealtime s[{sSTAMP}:{sSTAMP+1}]")
        a("s_waitcnt lgkmcnt(0)")
        a(f"v_writelane_b32 v255, s{sSTAMP}, {idx}")

def gen(path):
    a = Asm()
    a("s_cmp_ge_u32 s2, 256")
    a("s_cbranch_scc1 L_end")
    if STAMPS:
        a(f"s_memrealtime s[{sSTAMP+2}:{sSTAMP+3}]")
    a("s_load_dwordx16 s[16:31], s[0:1], 0")
    a("s_load_dwordx4 s[32:35], s[0:1], 64")
    a("s_load_dwordx4 s[36:39], s[0:1], 80")
    a("s_load_dwordx2 s[40:41], s[0:1], 96")
    a(f"v_lshrrev_b32 v{vT}, 6, v0")
    a(f"v_and_b32 v{vLane}, 63, v0")
    a(f"v_readfirstlane_b32 s{sW}, v{vT}")
    a(f"s_and_b32 s{sH}, s2, 7")
    a(f"s_lshr_b32 s{sJ}, s2, 3")
    a(f"s_and_b32 s{sT0}, s{sJ}, 24")
    a(f"s_add_u32 s{sH}, s{sH}, s{sT0}")
    a(f"s_and_b32 s{sJ}, s{sJ}, 7")
    a(f"v_lshrrev_b32 v{vT+1}, 4, v{vLane}")
    a(f"v_and_b32 v{vT+2}, 15, v{vLane}")
    a(f"v_lshlrev_b32 v{vT+3}, 4, v{vT+2}")
    a(f"v_lshl_add_u32 v{vWq}, v{vT+1}, 13, v{vT+3}")
    a(f"v_lshlrev_b32 v{vT+4}, 3, v{vT+2}")
    a(f"v_lshl_add_u32 v{vT+4}, v{vT+1}, 1, v{vT+4}")
    a(f"s_mul_i32 s{sT1}, s{sW}, 655360")
    a(f"s_lshl_b32 s{sT2}, s{sH}, 8")
    a(f"s_add_u32 s{sT1}, s{sT1}, s{sT2}")
    a(f"s_mul_i32 s{sT2}, s{sW}, 160")
    a(f"s_cmp_ge_u32 s{sJ}, 6")
    a("s_waitcnt lgkmcnt(0)")
    if STAMPS:
        a(f"v_writelane_b32 v255, s{sSTAMP+2}, 0")
    a("s_cselect_b64 s[16:17], s[26:27], s[16:17]")
    a("s_cselect_b64 s[22:23], s[32:33], s[22:23]")
    a("s_cselect_b64 s[18:19], s[28:29], s[18:19]")
    a("s_cselect_b64 s[20:21], s[30:31], s[20:21]")
    a(f"s_load_dword s{sTAG}, s[40:41], 0")
    a(f"s_add_u32 s{SRD_X}, s16, s{sT2}")
    a(f"s_addc_u32 s{SRD_X+1}, s17, 0")
    a(f"s_sub_u32 s{SRD_X+2}, 1280, s{sT2}")
    a(f"s_mov_b32 s{SRD_X+3}, 0x20000")
    a(f"s_add_u32 s{SRD_WQ}, s22, s{sT1}")
    a(f"s_addc_u32 s{SRD_WQ+1}, s23, 0")
    a(f"s_mov_b32 s{SRD_WQ+2}, {79*8192 + 256}")
    a(f"s_mov_b32 s{SRD_WQ+3}, 0x20000")
    XR0, XR1 = X, X + 1
    a(f"buffer_load_ushort v{XR0}, v{vT+4}, s[{SRD_X}:{SRD_X+3}], 0 offen")
    a(f"buffer_load_ushort v{XR1}, v{vT+4}, s[{SRD_X}:{SRD_X+3}], 0 offen offset:128")
    a(f"s_mov_b32 s{sT0}, 0")
    for t in range(20):
        a(f"buffer_load_dwordx4 v[{W+4*t}:{W+4*t+3}], v{vWq}, s[{SRD_WQ}:{SRD_WQ+3}], s{sT0} offen {NT}")
        if t < 19:
            a(f"s_add_u32 s{sT0}, s{sT0}, 32768")
    a(f"s_lshl_b32 s{sT0}, s{sW}, 8")
    a(f"v_lshl_add_u32 v{vT+5}, v{vLane}, 2, s{sT0}")
    a(f"v_mov_b32 v{vT+6}, 0")
    a(f"ds_write_b32 v{vT+5}, v{vT+6}")
    a(f"s_lshl_b32 s{sT0}, s{sJ}, 3")
    a(f"s_add_u32 s{sT0}, s{sT0}, s{sW}")
    a(f"s_lshl_b32 s{sT1}, s{sT0}, 4")
    a(f"s_mul_i32 s{sT2}, s{sT1}, 43691")
    a(f"s_lshr_b32 s{sT2}, s{sT2}, 17")
    a(f"s_add_u32 s{sT1}, s{sT1}, 16")
    a(f"s_mul_i32 s{sT3}, s{sT1}, 43691")
    a(f"s_lshr_b32 s{sT3}, s{sT3}, 17")
    a(f"s_sub_u32 s{sT3}, s{sT3}, s{sT2}")
    a(f"s_lshl_b32 s{sT0}, s{sT0}, 2")
    a(f"s_cmp_ge_u32 s{sJ}, 6")
    a(f"s_cselect_b32 s{sT2}, s{sT0}, s{sT2}")
    a(f"s_cselect_b32 s{sT3}, 4, s{sT3}")
    a(f"s_cmp_gt_u32 s{sT3}, 4")
    a(f"s_cselect_b32 s{sB4}, 0, 0xff800000")
    a(f"s_cmp_gt_u32 s{sT3}, 5")
    a(f"s_cselect_b32 s{sB5}, 0, 0xff800000")
    a(f"s_lshl_b32 s{sNT}, s{sT3}, 12")
    a(f"s_lshl_b32 s{sT0}, s{sH}, 20")
    a(f"s_lshl_b32 s{sT2}, s{sT2}, 12")
    a(f"s_add_u32 s{sT0}, s{sT0}, s{sT2}")
    for srd, p in ((SRD_K, 18), (SRD_V, 20)):
        a(f"s_add_u32 s{srd}, s{p}, s{sT0}")
        a(f"s_addc_u32 s{srd+1}, s{p+1}, 0")
        a(f"s_mov_b32 s{srd+2}, s{sNT}")
        a(f"s_mov_b32 s{srd+3}, 0x20000")
    for t in range(1, 6):
        a(f"s_movk_i32 s{sOFF+t-1}, {4096*t}")
    def soff(T):
        return "0" if T == 0 else f"s{sOFF+T-1}"
    a(f"v_lshrrev_b32 v{vT+5}, 2, v{vT+2}")
    a(f"v_and_b32 v{vT+6}, 3, v{vT+2}")
    a(f"v_lshlrev_b32 v{vKoff}, 8, v{vT+5}")
    a(f"v_lshl_add_u32 v{vKoff}, v{vT+1}, 6, v{vKoff}")
    a(f"v_lshl_add_u32 v{vKoff}, v{vT+6}, 4, v{vKoff}")
    a(f"v_lshlrev_b32 v{vLin}, 4, v{vLane}")
    a(f"v_mul_u32_u24 v{vWo}, 1280, v{vT+1}")
    a(f"v_add_u32 v{vWo}, v{vWo}, v{vT+3}")
    a("s_waitcnt lgkmcnt(0)")
    a(f"s_add_u32 s{sTAG}, s{sTAG}, 1")
    a("s_barrier")
    for T in range(6):
        for i in range(4):
            r = K + 16*T + 4*i
            a(f"buffer_load_dwordx4 v[{r}:{r+3}], v{vKoff}, s[{SRD_K}:{SRD_K+3}], {soff(T)} offen offset:{1024*i} {NT}")
    stamp(a, 1)
    a(f"v_and_b32 v{vT+5}, 1, v{vLane}")
    a(f"v_lshlrev_b32 v{vT+5}, 4, v{vT+5}")
    a(f"v_mov_b32 v{vT+6}, 0xffff")
    a(f"v_lshlrev_b32 v{vT+5}, v{vT+5}, v{vT+6}")
    for k, pat in enumerate((0x03030303, 0x0c0c0c0c, 0x30303030, 0xc0c0c0c0)):
        a(f"s_mov_b32 s{sMASK+2*k}, 0x{pat:08x}")
        a(f"s_mov_b32 s{sMASK+2*k+1}, 0x{pat:08x}")
    for k in range(4):
        a(f"v_cndmask_b32_e64 v{vMask+k}, 0, v{vT+5}, s[{sMASK+2*k}:{sMASK+2*k+1}]")
    AOP = [Q, Q + 4]
    QC = Q + 8
    a(f"s_waitcnt vmcnt({20+24})")
    a(f"v_lshl_or_b32 v{XR0}, v{XR0}, 16, v{XR0}")
    a(f"v_lshl_or_b32 v{XR1}, v{XR1}, 16, v{XR1}")
    a("s_nop 1")
    def ands(dst, src, bc):
        for k in range(4):
            a(f"v_and_b32_dpp v{dst+k}, v{src}, v{vMask+k} row_newbcast:{bc} row_mask:0xf bank_mask:0xf")
    def xsrc(t):
        return (XR0, t) if t < 16 else (XR1, t - 16)
    ands(AOP[0], *xsrc(0))
    for t in range(20):
        if t + 1 < 20:
            ands(AOP[(t+1) % 2], *xsrc(t+1))
        else:
            a("s_nop 1")
        if t % 4 == 0:
            a(f"s_waitcnt vmcnt({24 + 20 - (t+4)})")
        c = "0" if t == 0 else f"v[{QC}:{QC+3}]"
        a(f"v_mfma_f32_16x16x32_bf16 v[{QC}:{QC+3}], v[{AOP[t%2]}:{AOP[t%2]+3}], v[{W+4*t}:{W+4*t+3}], {c}")
    a(f"v_lshlrev_b32 v{vT+5}, 5, v{vT+2}")
    a(f"v_lshl_add_u32 v{vT+5}, v{vT+1}, 4, v{vT+5}")
    a("s_mov_b32 exec_hi, 0")
    a("s_nop 7")
    for r in range(4):
        a(f"ds_add_f32 v{vT+5}, v{QC+r} offset:{LDS_QACC+4*r}")
    a("s_mov_b64 exec, -1")
    a("s_waitcnt lgkmcnt(0)")
    a("s_barrier")
    stamp(a, 2)
    a(f"v_and_b32 v{vT+5}, 3, v{vLane}")
    a(f"v_lshlrev_b32 v{vT+5}, 5, v{vT+5}")
    a(f"v_lshl_add_u32 v{vT+5}, v{vT+1}, 7, v{vT+5}")
    QF = X + 4
    a(f"ds_read_b128 v[{QF}:{QF+3}], v{vT+5} offset:{LDS_QACC}")
    a(f"ds_read_b128 v[{QF+4}:{QF+7}], v{vT+5} offset:{LDS_QACC+16}")
    a(f"s_mov_b32 s{sT0}, 0x3e0293ee")
    a(f"s_mov_b32 s{sPERM}, 0x07060302")
    for i in range(4):
        pat = 0x000f000f << (4*i)
        a(f"s_mov_b32 s{sMASK+2*i}, 0x{pat:08x}")
        a(f"s_mov_b32 s{sMASK+2*i+1}, 0x{pat:08x}")
    a("s_waitcnt lgkmcnt(0)")
    for k in range(8):
        a(f"v_mul_f32 v{QF+k}, s{sT0}, v{QF+k}")
    HI = X + 12; LO = X + 16; TMP = X + 20
    for k in range(4):
        a(f"v_perm_b32 v{HI+k}, v{QF+2*k+1}, v{QF+2*k}, s{sPERM}")
    for k in range(8):
        a(f"v_and_b32 v{TMP+k}, 0xffff0000, v{QF+k}")
    for k in range(8):
        a(f"v_sub_f32 v{TMP+k}, v{QF+k}, v{TMP+k}")
    for k in range(4):
        a(f"v_cvt_pk_bf16_f32 v{LO+k}, v{TMP+2*k}, v{TMP+2*k+1}")
    for i in range(4):
        for k in range(4):
            a(f"v_cndmask_b32_e64 v{Q+8*i+k}, 0, v{HI+k}, s[{sMASK+2*i}:{sMASK+2*i+1}]")
        for k in range(4):
            a(f"v_cndmask_b32_e64 v{Q+8*i+4+k}, 0, v{LO+k}, s[{sMASK+2*i}:{sMASK+2*i+1}]")
    CT = W
    a("s_nop 1")
    for T in range(6):
        a(f"s_waitcnt vmcnt({24 - 4*(T+1)})")
        c = CT + 4*T
        for i in range(4):
            r = K + 16*T + 4*i
            cin = "0" if i == 0 else f"v[{c}:{c+3}]"
            a(f"v_mfma_f32_16x16x32_bf16 v[{c}:{c+3}], v[{r}:{r+3}], v[{Q+8*i}:{Q+8*i+3}], {cin}")
            a(f"v_mfma_f32_16x16x32_bf16 v[{c}:{c+3}], v[{r}:{r+3}], v[{Q+8*i+4}:{Q+8*i+7}], v[{c}:{c+3}]")
    a(f"s_mov_b32 s{sMASK}, 0xaaaaaaaa"); a(f"s_mov_b32 s{sMASK+1}, 0xaaaaaaaa")
    a(f"s_mov_b32 s{sMASK+2}, 0xcccccccc"); a(f"s_mov_b32 s{sMASK+3}, 0xcccccccc")
    a("s_nop 4")
    SC = X + 4
    T0 = W + 24; T1 = W + 32
    for T in range(6):
        c = CT + 4*T
        a(f"v_cndmask_b32_e64 v{T0+T}, v{c}, v{c+1}, s[{sMASK}:{sMASK+1}]")
        a(f"v_cndmask_b32_e64 v{T1+T}, v{c+2}, v{c+3}, s[{sMASK}:{sMASK+1}]")
    for T in range(6):
        a(f"v_cndmask_b32_e64 v{SC+T}, v{T0+T}, v{T1+T}, s[{sMASK+2}:{sMASK+3}]")
    for T in range(6):
        a(f"v_add_f32_dpp v{SC+T}, v{SC+T}, v{SC+T} quad_perm:[1,0,3,2] row_mask:0xf bank_mask:0xf")
    for T in range(6):
        a(f"v_add_f32_dpp v{SC+T}, v{SC+T}, v{SC+T} quad_perm:[2,3,0,1] row_mask:0xf bank_mask:0xf")
    a(f"v_add_f32 v{SC+4}, s{sB4}, v{SC+4}")
    a(f"v_add_f32 v{SC+5}, s{sB5}, v{SC+5}")
    for T in range(6):
        for i in range(4):
            r = K + 16*T + 4*i
            a(f"buffer_load_dwordx4 v[{r}:{r+3}], v{vLin}, s[{SRD_V}:{SRD_V+3}], {soff(T)} offen offset:{1024*i} {NT}")
    stamp(a, 3)
    MX = X + 10
    a(f"v_max3_f32 v{MX}, v{SC}, v{SC+1}, v{SC+2}")
    a(f"v_max3_f32 v{MX+1}, v{SC+3}, v{SC+4}, v{SC+5}")
    a(f"v_max_f32 v{MX}, v{MX}, v{MX+1}")
    def wave_reduce(op, r, sdst):
        a("s_nop 1")
        a(f"{op}_dpp v{r}, v{r}, v{r} row_ror:4 row_mask:0xf bank_mask:0xf")
        a("s_nop 1")
        a(f"{op}_dpp v{r}, v{r}, v{r} row_ror:8 row_mask:0xf bank_mask:0xf")
        a("s_nop 1")
        a(f"{op}_dpp v{r}, v{r}, v{r} row_bcast:15 row_mask:0xa bank_mask:0xf")
        a("s_nop 1")
        a(f"{op}_dpp v{r}, v{r}, v{r} row_bcast:31 row_mask:0xc bank_mask:0xf")
        a("s_nop 0")
        a(f"v_readlane_b32 s{sdst}, v{r}, 63")
        a("s_nop 1")
    wave_reduce("v_max_f32", MX, sM)
    PK = X + 12
    for T in range(6):
        a(f"v_subrev_f32 v{SC+T}, s{sM}, v{SC+T}")
    for T in range(6):
        a(f"v_exp_f32 v{SC+T}, v{SC+T}")
    a("s_nop 0")
    for T in range(6):
        a(f"v_cvt_pk_bf16_f32 v{PK+T}, v{SC+T}, v{SC+T}")
    for T in range(6):
        a(f"v_and_b32 v{SC+T}, 0xffff0000, v{PK+T}")
    a(f"v_add_f32 v{SC}, v{SC}, v{SC+1}")
    a(f"v_add_f32 v{SC+2}, v{SC+2}, v{SC+3}")
    a(f"v_add_f32 v{SC+4}, v{SC+4}, v{SC+5}")
    a(f"v_add_f32 v{SC}, v{SC}, v{SC+2}")
    a(f"v_add_f32 v{SC}, v{SC}, v{SC+4}")
    wave_reduce("v_add_f32", SC, sL)
    a(f"s_lshl_b32 s{sT0}, s{sJ}, 1")
    a(f"s_sub_u32 s{sT0}, s{sT0}, 6")
    a(f"s_cmp_ge_u32 s{sJ}, 6")
    a(f"s_cselect_b32 s{sBLK}, s{sT0}, s{sJ}")
    a(f"s_cselect_b32 s{sNTILE2}, 1, 0")
    a(f"s_cselect_b32 s{sWO2}, 256, 0x40000000")
    a(f"s_cmp_ge_u32 s{sBLK}, 5")
    a("s_cselect_b64 s[24:25], s[34:35], s[24:25]")
    a(f"s_cselect_b32 s{sT0}, 5, 0")
    a(f"s_sub_u32 s{sT0}, s{sBLK}, s{sT0}")
    a(f"s_lshl_b32 s{sT0}, s{sT0}, 8")
    a(f"s_lshl_b32 s{sT1}, s{sH}, 7")
    a(f"s_lshl_b32 s{sT2}, s{sW}, 4")
    a(f"s_add_u32 s{sT1}, s{sT1}, s{sT2}")
    a(f"s_mul_i32 s{sT1}, s{sT1}, 1280")
    a(f"s_add_u32 s{sT0}, s{sT0}, s{sT1}")
    a(f"s_add_u32 s{SRD_WO}, s24, s{sT0}")
    a(f"s_addc_u32 s{SRD_WO+1}, s25, 0")
    a(f"s_mov_b32 s{SRD_WO+2}, {15*1280 + 512}")
    a(f"s_mov_b32 s{SRD_WO+3}, 0x20000")
    a("s_barrier")
    WO = W
    for tt in range(2):
        for t in range(4):
            r = WO + 16*tt + 4*t
            if tt == 0:
                so = "0" if t == 0 else f"s{sT1}"
                if t > 0:
                    a(f"s_movk_i32 s{sT1}, {5120*t}")
            else:
                a(f"s_add_u32 s{sT1}, s{sWO2}, {5120*t}")
                so = f"s{sT1}"
            a(f"buffer_load_dwordx4 v[{r}:{r+3}], v{vWo}, s[{SRD_WO}:{SRD_WO+3}], {so} offen {NT}")
    stamp(a, 4)
    AO = [Q, Q + 4]; OC = Q + 8
    steps = [(T, t) for T in range(6) for t in range(4)]
    ands(AO[0], PK + 0, 0)
    for idx, (T, t) in enumerate(steps):
        if idx + 1 < len(steps):
            T2, t2 = steps[idx+1]
            ands(AO[(idx+1) % 2], PK + T2, 4*t2)
        else:
            a("s_nop 1")
        if t == 0:
            a(f"s_waitcnt vmcnt({8 + 24 - 4*(T+1)})")
        r = K + 16*T + 4*t
        c = "0" if idx == 0 else f"v[{OC}:{OC+3}]"
        a(f"v_mfma_f32_16x16x32_bf16 v[{OC}:{OC+3}], v[{AO[idx%2]}:{AO[idx%2]+3}], v[{r}:{r+3}], {c}")
    a(f"v_and_b32 v{vT+2}, 15, v{vLane}")
    a(f"v_lshrrev_b32 v{vT+1}, 4, v{vLane}")
    a(f"v_lshlrev_b32 v{vT+5}, 5, v{vT+2}")
    a(f"v_lshl_add_u32 v{vT+5}, v{vT+1}, 4, v{vT+5}")
    a(f"s_lshl_b32 s{sT0}, s{sW}, 9")
    a(f"v_add_u32 v{vT+5}, s{sT0}, v{vT+5}")
    a(f"s_lshl_b32 s{sT0}, s{sW}, 3")
    a(f"v_mov_b32 v{vT+6}, s{sT0}")
    a(f"v_mov_b32 v{X}, s{sM}")
    a(f"v_mov_b32 v{X+1}, s{sL}")
    a("s_mov_b32 exec_hi, 0")
    a(f"ds_write_b128 v{vT+5}, v[{OC}:{OC+3}] offset:{LDS_OPART}")
    a("s_mov_b64 exec, 1")
    a(f"ds_write_b64 v{vT+6}, v[{X}:{X+1}] offset:{LDS_ML}")
    a("s_mov_b64 exec, -1")
    a("s_waitcnt lgkmcnt(0)")
    a("s_barrier")
    stamp(a, 5)
    a(f"s_add_u32 s{SRD_R1}, s40, {WS_R1}")
    a(f"s_addc_u32 s{SRD_R1+1}, s41, 0")
    a(f"s_mov_b32 s{SRD_R1+2}, {256*2048}")
    a(f"s_mov_b32 s{SRD_R1+3}, 0x20000")
    a(f"s_add_u32 s{SRD_R2}, s40, {WS_R2}")
    a(f"s_addc_u32 s{SRD_R2+1}, s41, 0")
    a(f"s_mov_b32 s{SRD_R2+2}, {10*32*1024}")
    a(f"s_mov_b32 s{SRD_R2+3}, 0x20000")
    a(f"s_cmp_ge_u32 s{sW}, 2")
    a("s_cbranch_scc1 L_skip_comb")
    vTID = vT
    a(f"s_lshl_b32 s{sT0}, s{sW}, 6")
    a(f"v_add_u32 v{vTID}, s{sT0}, v{vLane}")
    a(f"v_lshlrev_b32 v{vT+1}, 2, v{vTID}")
    ML = K
    OP = K + 16
    a(f"v_mov_b32 v{vT+2}, 0")
    for k in range(4):
        a(f"ds_read_b128 v[{ML+4*k}:{ML+4*k+3}], v{vT+2} offset:{LDS_ML+16*k}")
    for w in range(8):
        a(f"ds_read_b32 v{OP+w}, v{vT+1} offset:{LDS_OPART+512*w}")
    a("s_waitcnt lgkmcnt(8)")
    MM = X + 2
    a(f"v_max3_f32 v{MM}, v{ML}, v{ML+2}, v{ML+4}")
    a(f"v_max3_f32 v{MM}, v{MM}, v{ML+6}, v{ML+8}")
    a(f"v_max3_f32 v{MM}, v{MM}, v{ML+10}, v{ML+12}")
    a(f"v_max_f32 v{MM}, v{MM}, v{ML+14}")
    for w in range(8):
        a(f"v_sub_f32 v{ML+2*w}, v{ML+2*w}, v{MM}")
    for w in range(8):
        a(f"v_exp_f32 v{ML+2*w}, v{ML+2*w}")
    a("s_waitcnt lgkmcnt(0)")
    G = X + 4
    a(f"v_mul_f32 v{G}, v{ML}, v{OP}")
    a(f"v_mul_f32 v{G+2}, v{ML}, v{ML+1}")
    for w in range(1, 8):
        a(f"v_fmac_f32 v{G}, v{ML+2*w}, v{OP+w}")
        a(f"v_fmac_f32 v{G+2}, v{ML+2*w}, v{ML+2*w+1}")
    a(f"v_mov_b32 v{G+1}, v{MM}")
    a(f"v_mov_b32 v{G+3}, s{sTAG}")
    a(f"s_lshl_b32 s{sT0}, s{sH}, 3")
    a(f"s_add_u32 s{sT1}, s{sT0}, s{sJ}")
    a(f"s_lshl_b32 s{sT1}, s{sT1}, 11")
    a(f"v_lshlrev_b32 v{vT+3}, 4, v{vTID}")
    a(f"buffer_store_dwordx4 v[{G}:{G+3}], v{vT+3}, s[{SRD_R1}:{SRD_R1+3}], s{sT1} offen sc1")
    stamp(a, 6)
    GR = K + 32
    a(f"s_cmp_ge_u32 s{sBLK}, 5")
    a(f"s_cselect_b32 s{sT1}, 6, 0")
    a(f"s_add_u32 s{sT1}, s{sT0}, s{sT1}")
    a(f"s_lshl_b32 s{sT1}, s{sT1}, 11")
    a(f"s_cselect_b32 s{sT2}, 1, 0")
    a(f"s_cmp_ge_u32 s{sBLK}, 5")
    a(f"s_cselect_b32 s{sT2}, 1, 0")
    for i in range(2, 6):
        a(f"v_mov_b32 v{GR+4*i}, 0")
        a(f"v_mov_b32 v{GR+4*i+1}, 0xff800000")
        a(f"v_mov_b32 v{GR+4*i+2}, 0")
        a(f"v_mov_b32 v{GR+4*i+3}, s{sTAG}")
    a(f"s_mov_b32 s{sSPIN}, {SPIN_MAX}")
    a.label("L_poll1")
    a(f"s_mov_b32 s{sT3}, s{sT1}")
    for i in range(6):
        if i == 2:
            a(f"s_cmp_eq_u32 s{sT2}, 1")
            a("s_cbranch_scc1 L_poll1_w")
        a(f"buffer_load_dwordx4 v[{GR+4*i}:{GR+4*i+3}], v{vT+3}, s[{SRD_R1}:{SRD_R1+3}], s{sT3} offen sc1")
        if i < 5:
            a(f"s_add_u32 s{sT3}, s{sT3}, 2048")
    a.label("L_poll1_w")
    a("s_waitcnt vmcnt(0)")
    a(f"v_xor_b32 v{vT+4}, s{sTAG}, v{GR+3}")
    for i in range(1, 6):
        a(f"v_xor_b32 v{vT+5}, s{sTAG}, v{GR+4*i+3}")
        a(f"v_or_b32 v{vT+4}, v{vT+4}, v{vT+5}")
    a(f"v_cmp_ne_u32 vcc, 0, v{vT+4}")
    a("s_cbranch_vccz L_poll1_done")
    a(f"s_sub_u32 s{sSPIN}, s{sSPIN}, 1")
    a(f"s_cmp_eq_u32 s{sSPIN}, 0")
    a("s_cbranch_scc1 L_poll1_done")
    a("s_sleep 1")
    a("s_branch L_poll1")
    a.label("L_poll1_done")
    stamp(a, 7)
    a(f"v_max3_f32 v{MM}, v{GR+1}, v{GR+5}, v{GR+9}")
    a(f"v_max3_f32 v{MM}, v{MM}, v{GR+13}, v{GR+17}")
    a(f"v_max_f32 v{MM}, v{MM}, v{GR+21}")
    for i in range(6):
        a(f"v_sub_f32 v{GR+4*i+1}, v{GR+4*i+1}, v{MM}")
    for i in range(6):
        a(f"v_exp_f32 v{GR+4*i+1}, v{GR+4*i+1}")
    a("s_nop 0")
    a(f"v_mul_f32 v{G}, v{GR+1}, v{GR}")
    a(f"v_mul_f32 v{G+1}, v{GR+1}, v{GR+2}")
    for i in range(1, 6):
        a(f"v_fmac_f32 v{G}, v{GR+4*i+1}, v{GR+4*i}")
        a(f"v_fmac_f32 v{G+1}, v{GR+4*i+1}, v{GR+4*i+2}")
    a(f"v_rcp_f32 v{G+1}, v{G+1}")
    a(f"s_mov_b32 s{sPERM}, 0x03020302")
    a(f"v_mul_f32 v{G}, v{G}, v{G+1}")
    a(f"v_and_b32 v{G+1}, 0xffff0000, v{G}")
    a(f"v_sub_f32 v{G+1}, v{G}, v{G+1}")
    a(f"v_perm_b32 v{G+2}, v{G}, v{G}, s{sPERM}")
    a(f"v_cvt_pk_bf16_f32 v{G+3}, v{G+1}, v{G+1}")
    a(f"v_lshlrev_b32 v{vT+4}, 3, v{vTID}")
    a(f"ds_write_b64 v{vT+4}, v[{G+2}:{G+3}] offset:{LDS_OHL}")
    a("s_waitcnt lgkmcnt(0)")
    a.label("L_skip_comb")
    a("s_barrier")
    stamp(a, 8)
    a(f"v_lshrrev_b32 v{vT+1}, 4, v{vLane}")
    a(f"v_bfe_u32 v{vT+2}, v{vLane}, 3, 1")
    a(f"v_lshlrev_b32 v{vT+3}, 3, v{vT+1}")
    a(f"v_lshl_add_u32 v{vT+3}, v{vT+2}, 2, v{vT+3}")
    a(f"s_lshl_b32 s{sT0}, s{sW}, 7")
    a(f"v_add_u32 v{vT+3}, s{sT0}, v{vT+3}")
    OS = X + 8
    for t in range(4):
        a(f"ds_read_b32 v{OS+t}, v{vT+3} offset:{LDS_OHL+32*t}")
    a(f"v_and_b32 v{vT+4}, 15, v{vLane}")
    a(f"v_lshlrev_b32 v{vT+4}, 5, v{vT+4}")
    a(f"v_and_b32 v{vT+5}, 1, v{vT+1}")
    a(f"v_lshl_add_u32 v{vT+4}, v{vT+5}, 4, v{vT+4}")
    a("s_waitcnt lgkmcnt(0)")
    AP = Q
    for t in range(4):
        for k in range(4):
            a(f"v_and_b32 v{AP+4*t+k}, v{OS+t}, v{vMask+k}")
    C0 = Q + 16; C1 = Q + 20
    a("s_waitcnt vmcnt(0)")
    a("s_nop 0")
    for t in range(4):
        c = "0" if t == 0 else f"v[{C0}:{C0+3}]"
        a(f"v_mfma_f32_16x16x32_bf16 v[{C0}:{C0+3}], v[{AP+4*t}:{AP+4*t+3}], v[{WO+4*t}:{WO+4*t+3}], {c}")
    for t in range(4):
        c = "0" if t == 0 else f"v[{C1}:{C1+3}]"
        a(f"v_mfma_f32_16x16x32_bf16 v[{C1}:{C1+3}], v[{AP+4*t}:{AP+4*t+3}], v[{WO+16+4*t}:{WO+16+4*t+3}], {c}")
    a("s_nop 3")
    for r in range(4):
        a(f"ds_add_f32 v{vT+4}, v{C0+r} offset:{LDS_OACC+4*r}")
    a(f"s_cmp_eq_u32 s{sNTILE2}, 0")
    a("s_cbranch_scc1 L_one_tile")
    for r in range(4):
        a(f"ds_add_f32 v{vT+4}, v{C1+r} offset:{LDS_OACC+512+4*r}")
    a.label("L_one_tile")
    a("s_waitcnt lgkmcnt(0)")
    a("s_barrier")
    stamp(a, 9)
    a(f"s_lshl_b32 s{sT0}, s{sNTILE2}, 1")
    a(f"s_add_u32 s{sT0}, s{sT0}, 2")
    a(f"s_cmp_ge_u32 s{sW}, s{sT0}")
    a("s_cbranch_scc1 L_no_pub")
    a(f"s_lshl_b32 s{sT0}, s{sW}, 6")
    a(f"v_add_u32 v{vT}, s{sT0}, v{vLane}")
    a(f"v_lshlrev_b32 v{vT+1}, 2, v{vT}")
    a(f"ds_read_b32 v{X}, v{vT+1} offset:{LDS_OACC}")
    a(f"s_lshr_b32 s{sT1}, s{sW}, 1")
    a(f"s_add_u32 s{sT1}, s{sT1}, s{sBLK}")
    a(f"s_lshl_b32 s{sT1}, s{sT1}, 5")
    a(f"s_add_u32 s{sT1}, s{sT1}, s{sH}")
    a(f"s_lshl_b32 s{sT1}, s{sT1}, 10")
    a(f"v_and_b32 v{vT+2}, 127, v{vT}")
    a(f"v_lshlrev_b32 v{vT+2}, 3, v{vT+2}")
    a(f"v_mov_b32 v{X+1}, s{sTAG}")
    a("s_waitcnt lgkmcnt(0)")
    a(f"buffer_store_dwordx2 v[{X}:{X+1}], v{vT+2}, s[{SRD_R2}:{SRD_R2+3}], s{sT1} offen sc1")
    a.label("L_no_pub")
    a(f"s_cmp_lg_u32 s{sW}, 4")
    a("s_cbranch_scc1 L_fin")
    a("s_cmp_ge_u32 s2, 40")
    a("s_cbranch_scc1 L_fin")
    a(f"s_lshr_b32 s{sT0}, s2, 2")
    a(f"s_and_b32 s{sT1}, s2, 3")
    a(f"s_lshl_b32 s{sT2}, s{sT0}, 15")
    a(f"s_lshl_b32 s{sT3}, s{sT1}, 8")
    a(f"s_add_u32 s{sT2}, s{sT2}, s{sT3}")
    a(f"v_lshrrev_b32 v{vT+1}, 4, v{vLane}")
    a(f"v_and_b32 v{vT+2}, 15, v{vLane}")
    a(f"v_lshlrev_b32 v{vT+3}, 10, v{vT+1}")
    a(f"v_lshl_add_u32 v{vT+3}, v{vT+2}, 4, v{vT+3}")
    a(f"v_and_b32 v{vT+4}, 31, v{vLane}")
    a(f"v_lshlrev_b32 v{vT+4}, 10, v{vT+4}")
    a(f"s_mov_b32 s{sSPIN}, {SPIN_MAX}")
    F = K
    FX = K + 32
    a(f"v_mov_b32 v{FX+1}, s{sTAG}")
    a.label("L_poll2")
    a(f"s_mov_b32 s{sT3}, s{sT2}")
    for k in range(8):
        a(f"buffer_load_dwordx4 v[{F+4*k}:{F+4*k+3}], v{vT+3}, s[{SRD_R2}:{SRD_R2+3}], s{sT3} offen sc1")
        if k < 7:
            a(f"s_add_u32 s{sT3}, s{sT3}, 4096")
    a("s_cmp_lg_u32 s2, 0")
    a("s_cbranch_scc1 L_poll2_w")
    a(f"s_mov_b32 s{sT3}, {6*32768}")
    a(f"buffer_load_dwordx2 v[{FX}:{FX+1}], v{vT+4}, s[{SRD_R2}:{SRD_R2+3}], s{sT3} offen sc1")
    a.label("L_poll2_w")
    a("s_waitcnt vmcnt(0)")
    a(f"v_xor_b32 v{vT+5}, s{sTAG}, v{FX+1}")
    for k in range(8):
        a(f"v_xor_b32 v{vT+6}, s{sTAG}, v{F+4*k+1}")
        a(f"v_or_b32 v{vT+5}, v{vT+5}, v{vT+6}")
        a(f"v_xor_b32 v{vT+6}, s{sTAG}, v{F+4*k+3}")
        a(f"v_or_b32 v{vT+5}, v{vT+5}, v{vT+6}")
    a(f"v_cmp_ne_u32 vcc, 0, v{vT+5}")
    a("s_cbranch_vccz L_poll2_done")
    a(f"s_sub_u32 s{sSPIN}, s{sSPIN}, 1")
    a(f"s_cmp_eq_u32 s{sSPIN}, 0")
    a("s_cbranch_scc1 L_poll2_done")
    a("s_sleep 1")
    a("s_branch L_poll2")
    a.label("L_poll2_done")
    stamp(a, 10)
    for k in range(1, 8):
        a(f"v_add_f32 v{F}, v{F}, v{F+4*k}")
        a(f"v_add_f32 v{F+2}, v{F+2}, v{F+4*k+2}")
    for r in (F, F + 2):
        a(f"v_mov_b32 v{r+1}, v{r}")
    a("s_nop 1")
    for r in (F, F + 2):
        a(f"v_permlane32_swap_b32 v{r}, v{r+1}")
    a("s_nop 1")
    for r in (F, F + 2):
        a(f"v_add_f32 v{r}, v{r}, v{r+1}")
    for r in (F, F + 2):
        a(f"v_mov_b32 v{r+1}, v{r}")
    a("s_nop 1")
    for r in (F, F + 2):
        a(f"v_permlane16_swap_b32 v{r}, v{r+1}")
    a("s_nop 1")
    for r in (F, F + 2):
        a(f"v_add_f32 v{r}, v{r}, v{r+1}")
    a(f"v_cvt_pk_bf16_f32 v{F}, v{F}, v{F+2}")
    a(f"s_lshl_b32 s{sT0}, s{sT0}, 8")
    a(f"s_lshl_b32 s{sT1}, s{sT1}, 6")
    a(f"s_add_u32 s{sT0}, s{sT0}, s{sT1}")
    a(f"v_lshlrev_b32 v{vT+2}, 2, v{vT+2}")
    a(f"s_mov_b32 s{SRD_OUT}, s36")
    a(f"s_mov_b32 s{SRD_OUT+1}, s37")
    a(f"s_mov_b32 s{SRD_OUT+2}, 2560")
    a(f"s_mov_b32 s{SRD_OUT+3}, 0x20000")
    a("s_mov_b64 exec, 0xffff")
    a(f"buffer_store_dword v{F}, v{vT+2}, s[{SRD_OUT}:{SRD_OUT+3}], s{sT0} offen")
    a("s_cmp_lg_u32 s2, 0")
    a("s_cbranch_scc1 L_fin2")
    a("s_mov_b64 exec, 1")
    a(f"v_mov_b32 v{vT+5}, 0")
    a(f"v_mov_b32 v{vT+6}, s{sTAG}")
    a(f"global_store_dword v{vT+5}, v{vT+6}, s[40:41] sc1")
    a.label("L_fin2")
    a("s_mov_b64 exec, -1")
    a.label("L_fin")
    if STAMPS:
        stamp(a, 11)
        a(f"s_lshl_b32 s{sT0}, s2, 3")
        a(f"s_add_u32 s{sT0}, s{sT0}, s{sW}")
        a(f"s_lshl_b32 s{sT0}, s{sT0}, 6")
        a(f"s_add_u32 s{sT0}, s{sT0}, {2<<20}")
        a(f"v_lshlrev_b32 v{vT}, 2, v{vLane}")
        a(f"v_add_u32 v{vT}, s{sT0}, v{vT}")
        a("s_mov_b64 exec, 0xffff")
        a(f"global_store_dword v{vT}, v255, s[40:41]")
    a.label("L_end")
    a("s_endpgm")
    k = kernel_text(NAME + "_kernel", a.text(), 256, 102)
    open(path, "w").write(file_text([(NAME + "_kernel", 256, 512, LDS_BYTES)], [k]))

if __name__ == "__main__":
    out = sys.argv[1]
    if "--stamps" in sys.argv: STAMPS = True
    gen(out)
```

```python
import sys
from asmgen import *

class Cfg:
    stamps = False
    fq = ""; fk = ""; fv = ""; fo = ""
    spin_max = 400000
    kpart1 = 2
    sleep1 = 1
    sleep2 = 1

sW = 3; sH = 4; sJ = 5
sT0, sT1, sT2, sT3 = 6, 7, 8, 9
sNT = 10; sB4, sB5 = 11, 12
sTAG = 13; sSPIN = 14; sRB = 15
SRD_X = 44; SRD_WQ = 48; SRD_K = 52; SRD_V = 56; SRD_WO = 60; SRD_R1 = 64; SRD_R2 = 68; SRD_OUT = 72
sOFF = 76
sM = 82; sL = 83
sMASK = 84
sBRT = 92
sPERM = 94
sSTAMP = 96

vLane = 0
vLin = 1; vKoff = 2; vWq = 3; vWo = 4
vMask = 5
vT = 9
W = 16; K = 96; Q = 192; X = 224

LDS_QACC = 0
LDS_ML = 512
LDS_OPART = 1024
LDS_OHL = 5120
LDS_BYTES = 8192
WS_R1 = 4096
WS_R2 = 1 << 20
WS_STAMP = 4 << 20

def gen(path, cfg):
    a = Asm()
    def stamp(idx):
        if cfg.stamps:
            a(f"s_memrealtime s[{sSTAMP}:{sSTAMP+1}]")
            a("s_waitcnt lgkmcnt(0)")
            a(f"v_writelane_b32 v255, s{sSTAMP}, {idx}")
    def soff(T):
        return "0" if T == 0 else f"s{sOFF+T-1}"
    def ands(dst, src, bc):
        for k in range(4):
            a(f"v_and_b32_dpp v{dst+k}, v{src}, v{vMask+k} row_newbcast:{bc} row_mask:0xf bank_mask:0xf")

    a("s_cmp_ge_u32 s2, 256")
    a("s_cbranch_scc1 L_end")
    if cfg.stamps:
        a(f"s_memrealtime s[{sSTAMP+2}:{sSTAMP+3}]")
    a("s_load_dwordx16 s[16:31], s[0:1], 0")
    a("s_load_dwordx4 s[32:35], s[0:1], 64")
    a("s_load_dwordx4 s[36:39], s[0:1], 80")
    a("s_load_dwordx2 s[40:41], s[0:1], 96")
    a(f"v_lshrrev_b32 v{vT}, 6, v0")
    a(f"v_and_b32 v{vLane}, 63, v0")
    a(f"v_readfirstlane_b32 s{sW}, v{vT}")
    a(f"s_and_b32 s{sH}, s2, 7")
    a(f"s_lshr_b32 s{sJ}, s2, 3")
    a(f"s_and_b32 s{sT0}, s{sJ}, 24")
    a(f"s_add_u32 s{sH}, s{sH}, s{sT0}")
    a(f"s_and_b32 s{sJ}, s{sJ}, 7")
    a(f"v_lshrrev_b32 v{vT+1}, 4, v{vLane}")
    a(f"v_and_b32 v{vT+2}, 15, v{vLane}")
    a(f"v_lshlrev_b32 v{vT+3}, 4, v{vT+2}")
    a(f"v_lshl_add_u32 v{vWq}, v{vT+1}, 13, v{vT+3}")
    a(f"v_lshlrev_b32 v{vT+4}, 3, v{vT+2}")
    a(f"v_lshl_add_u32 v{vT+4}, v{vT+1}, 1, v{vT+4}")
    a(f"s_mul_i32 s{sT1}, s{sW}, 655360")
    a(f"s_lshl_b32 s{sT2}, s{sH}, 8")
    a(f"s_add_u32 s{sT1}, s{sT1}, s{sT2}")
    a(f"s_mul_i32 s{sT2}, s{sW}, 160")
    a(f"s_cmp_ge_u32 s{sJ}, 6")
    a("s_waitcnt lgkmcnt(0)")
    if cfg.stamps:
        a(f"v_writelane_b32 v255, s{sSTAMP+2}, 0")
    a("s_cselect_b64 s[16:17], s[26:27], s[16:17]")
    a("s_cselect_b64 s[22:23], s[32:33], s[22:23]")
    a("s_cselect_b64 s[18:19], s[28:29], s[18:19]")
    a("s_cselect_b64 s[20:21], s[30:31], s[20:21]")
    a(f"s_add_u32 s{SRD_WQ}, s22, s{sT1}")
    a(f"s_addc_u32 s{SRD_WQ+1}, s23, 0")
    a(f"s_mov_b32 s{SRD_WQ+2}, {79*8192 + 256}")
    a(f"s_mov_b32 s{SRD_WQ+3}, 0x20000")
    a(f"s_add_u32 s{SRD_X}, s16, s{sT2}")
    a(f"s_addc_u32 s{SRD_X+1}, s17, 0")
    a(f"s_sub_u32 s{SRD_X+2}, 1280, s{sT2}")
    a(f"s_mov_b32 s{SRD_X+3}, 0x20000")
    XR0, XR1 = X, X + 1
    a(f"buffer_load_ushort v{XR0}, v{vT+4}, s[{SRD_X}:{SRD_X+3}], 0 offen")
    a(f"buffer_load_ushort v{XR1}, v{vT+4}, s[{SRD_X}:{SRD_X+3}], 0 offen offset:128")
    a(f"s_mov_b32 s{sT0}, 0")
    for t in range(20):
        a(f"buffer_load_dwordx4 v[{W+4*t}:{W+4*t+3}], v{vWq}, s[{SRD_WQ}:{SRD_WQ+3}], s{sT0} offen {cfg.fq}")
        if t < 19:
            a(f"s_add_u32 s{sT0}, s{sT0}, 32768")
    a(f"s_load_dword s{sTAG}, s[40:41], 0")
    a(f"v_lshlrev_b32 v{vT+5}, 2, v0")
    a(f"v_mov_b32 v{vT+6}, 0")
    a(f"s_lshl_b32 s{sT0}, s{sW}, 8")
    a(f"s_cmp_ge_u32 s{sW}, 2")
    a("s_cbranch_scc1 L_nozero")
    a(f"v_add_u32 v{vT+5}, s{sT0}, v{vT+5}")
    a(f"ds_write_b32 v{vT+5}, v{vT+6} offset:{LDS_QACC}")
    a.label("L_nozero")
    a(f"s_lshl_b32 s{sT0}, s{sJ}, 3")
    a(f"s_add_u32 s{sT0}, s{sT0}, s{sW}")
    a(f"s_lshl_b32 s{sT1}, s{sT0}, 4")
    a(f"s_mul_i32 s{sT2}, s{sT1}, 43691")
    a(f"s_lshr_b32 s{sT2}, s{sT2}, 17")
    a(f"s_add_u32 s{sT1}, s{sT1}, 16")
    a(f"s_mul_i32 s{sT3}, s{sT1}, 43691")
    a(f"s_lshr_b32 s{sT3}, s{sT3}, 17")
    a(f"s_sub_u32 s{sT3}, s{sT3}, s{sT2}")
    a(f"s_lshl_b32 s{sT0}, s{sT0}, 2")
    a(f"s_cmp_ge_u32 s{sJ}, 6")
    a(f"s_cselect_b32 s{sT2}, s{sT0}, s{sT2}")
    a(f"s_cselect_b32 s{sT3}, 4, s{sT3}")
    a(f"s_cmp_gt_u32 s{sT3}, 4")
    a(f"s_cselect_b32 s{sB4}, 0, 0xff800000")
    a(f"s_cmp_gt_u32 s{sT3}, 5")
    a(f"s_cselect_b32 s{sB5}, 0, 0xff800000")
    a(f"s_lshl_b32 s{sNT}, s{sT3}, 12")
    a(f"s_lshl_b32 s{sT0}, s{sH}, 20")
    a(f"s_lshl_b32 s{sT2}, s{sT2}, 12")
    a(f"s_add_u32 s{sT0}, s{sT0}, s{sT2}")
    for srd, p in ((SRD_K, 18), (SRD_V, 20)):
        a(f"s_add_u32 s{srd}, s{p}, s{sT0}")
        a(f"s_addc_u32 s{srd+1}, s{p+1}, 0")
        a(f"s_mov_b32 s{srd+2}, s{sNT}")
        a(f"s_mov_b32 s{srd+3}, 0x20000")
    for t in range(1, 6):
        a(f"s_movk_i32 s{sOFF+t-1}, {4096*t}")
    a(f"v_lshrrev_b32 v{vT+5}, 2, v{vT+2}")
    a(f"v_and_b32 v{vT+6}, 3, v{vT+2}")
    a(f"v_lshlrev_b32 v{vKoff}, 8, v{vT+5}")
    a(f"v_lshl_add_u32 v{vKoff}, v{vT+1}, 6, v{vKoff}")
    a(f"v_lshl_add_u32 v{vKoff}, v{vT+6}, 4, v{vKoff}")
    a(f"v_lshlrev_b32 v{vLin}, 4, v{vLane}")
    a(f"v_mul_u32_u24 v{vWo}, 1280, v{vT+1}")
    a(f"v_add_u32 v{vWo}, v{vWo}, v{vT+3}")
    a("s_waitcnt lgkmcnt(0)")
    a(f"s_add_u32 s{sTAG}, s{sTAG}, 1")
    a("s_barrier")
    def kloads(T0, T1):
        for T in range(T0, T1):
            for i in range(4):
                r = K + 16*T + 4*i
                a(f"buffer_load_dwordx4 v[{r}:{r+3}], v{vKoff}, s[{SRD_K}:{SRD_K+3}], {soff(T)} offen offset:{1024*i} {cfg.fk}")
    KP = cfg.kpart1
    kloads(0, KP)
    stamp(1)
    a(f"v_and_b32 v{vT+5}, 1, v{vLane}")
    a(f"v_lshlrev_b32 v{vT+5}, 4, v{vT+5}")
    a(f"v_mov_b32 v{vT+6}, 0xffff")
    a(f"v_lshlrev_b32 v{vT+5}, v{vT+5}, v{vT+6}")
    for k, pat in enumerate((0x03030303, 0x0c0c0c0c, 0x30303030, 0xc0c0c0c0)):
        a(f"s_mov_b32 s{sMASK+2*k}, 0x{pat:08x}")
        a(f"s_mov_b32 s{sMASK+2*k+1}, 0x{pat:08x}")
    for k in range(4):
        a(f"v_cndmask_b32_e64 v{vMask+k}, 0, v{vT+5}, s[{sMASK+2*k}:{sMASK+2*k+1}]")
    AOP = [Q, Q + 4]; QC = Q + 8
    a(f"s_waitcnt vmcnt({20+4*KP})")
    a(f"v_lshl_or_b32 v{XR0}, v{XR0}, 16, v{XR0}")
    a(f"v_lshl_or_b32 v{XR1}, v{XR1}, 16, v{XR1}")
    a("s_nop 1")
    def xsrc(t):
        return (XR0, t) if t < 16 else (XR1, t - 16)
    ands(AOP[0], *xsrc(0))
    for t in range(20):
        if t + 1 < 20:
            ands(AOP[(t+1) % 2], *xsrc(t+1))
        else:
            a("s_nop 1")
        if t % 4 == 0:
            a(f"s_waitcnt vmcnt({4*KP + 20 - (t+4)})")
        c = "0" if t == 0 else f"v[{QC}:{QC+3}]"
        a(f"v_mfma_f32_16x16x32_bf16 v[{QC}:{QC+3}], v[{AOP[t%2]}:{AOP[t%2]+3}], v[{W+4*t}:{W+4*t+3}], {c}")
    a(f"v_lshlrev_b32 v{vT+5}, 5, v{vT+2}")
    a(f"v_lshl_add_u32 v{vT+5}, v{vT+1}, 4, v{vT+5}")
    a("s_mov_b32 exec_hi, 0")
    a("s_nop 7")
    for r in range(4):
        a(f"ds_add_f32 v{vT+5}, v{QC+r} offset:{LDS_QACC+4*r}")
    a("s_mov_b64 exec, -1")
    a("s_waitcnt lgkmcnt(0)")
    a("s_barrier")
    kloads(KP, 6)
    stamp(2)
    a(f"v_and_b32 v{vT+5}, 3, v{vLane}")
    a(f"v_lshlrev_b32 v{vT+5}, 5, v{vT+5}")
    a(f"v_lshl_add_u32 v{vT+5}, v{vT+1}, 7, v{vT+5}")
    QF = X + 4
    a(f"ds_read_b128 v[{QF}:{QF+3}], v{vT+5} offset:{LDS_QACC}")
    a(f"ds_read_b128 v[{QF+4}:{QF+7}], v{vT+5} offset:{LDS_QACC+16}")
    a(f"s_mov_b32 s{sT0}, 0x3e0293ee")
    a(f"s_mov_b32 s{sPERM}, 0x07060302")
    for i in range(4):
        pat = 0x000f000f << (4*i)
        a(f"s_mov_b32 s{sMASK+2*i}, 0x{pat:08x}")
        a(f"s_mov_b32 s{sMASK+2*i+1}, 0x{pat:08x}")
    a("s_waitcnt lgkmcnt(0)")
    for k in range(8):
        a(f"v_mul_f32 v{QF+k}, s{sT0}, v{QF+k}")
    HI = X + 12; LO = X + 16; TMP = X + 20
    for k in range(4):
        a(f"v_perm_b32 v{HI+k}, v{QF+2*k+1}, v{QF+2*k}, s{sPERM}")
    for k in range(8):
        a(f"v_and_b32 v{TMP+k}, 0xffff0000, v{QF+k}")
    for k in range(8):
        a(f"v_sub_f32 v{TMP+k}, v{QF+k}, v{TMP+k}")
    for k in range(4):
        a(f"v_cvt_pk_bf16_f32 v{LO+k}, v{TMP+2*k}, v{TMP+2*k+1}")
    for i in range(4):
        for k in range(4):
            a(f"v_cndmask_b32_e64 v{Q+8*i+k}, 0, v{HI+k}, s[{sMASK+2*i}:{sMASK+2*i+1}]")
        for k in range(4):
            a(f"v_cndmask_b32_e64 v{Q+8*i+4+k}, 0, v{LO+k}, s[{sMASK+2*i}:{sMASK+2*i+1}]")
    CT = W
    a("s_nop 1")
    for T in range(6):
        a(f"s_waitcnt vmcnt({24 - 4*(T+1)})")
        c = CT + 4*T
        for i in range(4):
            r = K + 16*T + 4*i
            cin = "0" if i == 0 else f"v[{c}:{c+3}]"
            a(f"v_mfma_f32_16x16x32_bf16 v[{c}:{c+3}], v[{r}:{r+3}], v[{Q+8*i}:{Q+8*i+3}], {cin}")
            a(f"v_mfma_f32_16x16x32_bf16 v[{c}:{c+3}], v[{r}:{r+3}], v[{Q+8*i+4}:{Q+8*i+7}], v[{c}:{c+3}]")
    for T in range(6):
        for i in range(4):
            r = K + 16*T + 4*i
            a(f"buffer_load_dwordx4 v[{r}:{r+3}], v{vLin}, s[{SRD_V}:{SRD_V+3}], {soff(T)} offen offset:{1024*i} {cfg.fv}")
    stamp(3)
    a(f"s_mov_b32 s{sMASK}, 0xaaaaaaaa"); a(f"s_mov_b32 s{sMASK+1}, 0xaaaaaaaa")
    a(f"s_mov_b32 s{sMASK+2}, 0xcccccccc"); a(f"s_mov_b32 s{sMASK+3}, 0xcccccccc")
    SC = X + 4
    T0 = W + 24; T1 = W + 32
    for T in range(6):
        c = CT + 4*T
        a(f"v_cndmask_b32_e64 v{T0+T}, v{c}, v{c+1}, s[{sMASK}:{sMASK+1}]")
        a(f"v_cndmask_b32_e64 v{T1+T}, v{c+2}, v{c+3}, s[{sMASK}:{sMASK+1}]")
    for T in range(6):
        a(f"v_cndmask_b32_e64 v{SC+T}, v{T0+T}, v{T1+T}, s[{sMASK+2}:{sMASK+3}]")
    for T in range(6):
        a(f"v_add_f32_dpp v{SC+T}, v{SC+T}, v{SC+T} quad_perm:[1,0,3,2] row_mask:0xf bank_mask:0xf")
    for T in range(6):
        a(f"v_add_f32_dpp v{SC+T}, v{SC+T}, v{SC+T} quad_perm:[2,3,0,1] row_mask:0xf bank_mask:0xf")
    a(f"v_add_f32 v{SC+4}, s{sB4}, v{SC+4}")
    a(f"v_add_f32 v{SC+5}, s{sB5}, v{SC+5}")
    MX = X + 10
    a(f"v_max3_f32 v{MX}, v{SC}, v{SC+1}, v{SC+2}")
    a(f"v_max3_f32 v{MX+1}, v{SC+3}, v{SC+4}, v{SC+5}")
    a(f"v_max_f32 v{MX}, v{MX}, v{MX+1}")
    def wave_reduce(op, r, sdst):
        a("s_nop 1")
        a(f"{op}_dpp v{r}, v{r}, v{r} row_ror:4 row_mask:0xf bank_mask:0xf")
        a("s_nop 1")
        a(f"{op}_dpp v{r}, v{r}, v{r} row_ror:8 row_mask:0xf bank_mask:0xf")
        a("s_nop 1")
        a(f"{op}_dpp v{r}, v{r}, v{r} row_bcast:15 row_mask:0xa bank_mask:0xf")
        a("s_nop 1")
        a(f"{op}_dpp v{r}, v{r}, v{r} row_bcast:31 row_mask:0xc bank_mask:0xf")
        a("s_nop 0")
        a(f"v_readlane_b32 s{sdst}, v{r}, 63")
        a("s_nop 1")
    wave_reduce("v_max_f32", MX, sM)
    PK = X + 12
    for T in range(6):
        a(f"v_subrev_f32 v{SC+T}, s{sM}, v{SC+T}")
    for T in range(6):
        a(f"v_exp_f32 v{SC+T}, v{SC+T}")
    a("s_nop 0")
    for T in range(6):
        a(f"v_cvt_pk_bf16_f32 v{PK+T}, v{SC+T}, v{SC+T}")
    for T in range(6):
        a(f"v_and_b32 v{SC+T}, 0xffff0000, v{PK+T}")
    a(f"v_add_f32 v{SC}, v{SC}, v{SC+1}")
    a(f"v_add_f32 v{SC+2}, v{SC+2}, v{SC+3}")
    a(f"v_add_f32 v{SC+4}, v{SC+4}, v{SC+5}")
    a(f"v_add_f32 v{SC}, v{SC}, v{SC+2}")
    a(f"v_add_f32 v{SC}, v{SC}, v{SC+4}")
    wave_reduce("v_add_f32", SC, sL)
    a(f"s_lshr_b32 s{sBRT}, s{sJ}, 2")
    a(f"s_and_b32 s{sRB}, s{sJ}, 3")
    a(f"s_cmp_eq_u32 s{sBRT}, 1")
    a("s_cselect_b64 s[24:25], s[34:35], s[24:25]")
    a(f"s_lshl_b32 s{sT1}, s{sH}, 7")
    a(f"s_lshl_b32 s{sT2}, s{sRB}, 5")
    a(f"s_add_u32 s{sT1}, s{sT1}, s{sT2}")
    a(f"s_mul_i32 s{sT1}, s{sT1}, 1280")
    a(f"s_lshl_b32 s{sT0}, s{sW}, 8")
    a(f"s_add_u32 s{sT0}, s{sT0}, s{sT1}")
    a(f"s_add_u32 s{SRD_WO}, s24, s{sT0}")
    a(f"s_addc_u32 s{SRD_WO+1}, s25, 0")
    a(f"s_cmp_lt_u32 s{sW}, 5")
    a(f"s_cselect_b32 s{SRD_WO+2}, {31*1280 + 256}, 0")
    a(f"s_mov_b32 s{SRD_WO+3}, 0x20000")
    a("s_barrier")
    WO = W
    for t in range(8):
        r = WO + 4*t
        so = "0"
        if t > 0:
            a(f"s_movk_i32 s{sT1}, {5120*t}" if 5120*t < 32768 else f"s_mov_b32 s{sT1}, {5120*t}")
            so = f"s{sT1}"
        a(f"buffer_load_dwordx4 v[{r}:{r+3}], v{vWo}, s[{SRD_WO}:{SRD_WO+3}], {so} offen {cfg.fo}")
    stamp(4)
    AO = [Q, Q + 4]; OC = Q + 8
    steps = [(T, t) for T in range(6) for t in range(4)]
    ands(AO[0], PK + 0, 0)
    for idx, (T, t) in enumerate(steps):
        if idx + 1 < len(steps):
            T2, t2 = steps[idx+1]
            ands(AO[(idx+1) % 2], PK + T2, 4*t2)
        else:
            a("s_nop 1")
        if t == 0:
            a(f"s_waitcnt vmcnt({8 + 24 - 4*(T+1)})")
        r = K + 16*T + 4*t
        c = "0" if idx == 0 else f"v[{OC}:{OC+3}]"
        a(f"v_mfma_f32_16x16x32_bf16 v[{OC}:{OC+3}], v[{AO[idx%2]}:{AO[idx%2]+3}], v[{r}:{r+3}], {c}")
    a(f"v_lshlrev_b32 v{vT+5}, 5, v{vT+2}")
    a(f"v_lshl_add_u32 v{vT+5}, v{vT+1}, 4, v{vT+5}")
    a(f"s_lshl_b32 s{sT0}, s{sW}, 9")
    a(f"v_add_u32 v{vT+5}, s{sT0}, v{vT+5}")
    a(f"s_lshl_b32 s{sT0}, s{sW}, 3")
    a(f"v_mov_b32 v{vT+6}, s{sT0}")
    a(f"v_mov_b32 v{X}, s{sM}")
    a(f"v_mov_b32 v{X+1}, s{sL}")
    a("s_mov_b32 exec_hi, 0")
    a("s_nop 0")
    a(f"ds_write_b128 v{vT+5}, v[{OC}:{OC+3}] offset:{LDS_OPART}")
    a("s_mov_b64 exec, 1")
    a(f"ds_write_b64 v{vT+6}, v[{X}:{X+1}] offset:{LDS_ML}")
    a("s_mov_b64 exec, -1")
    a(f"s_add_u32 s{SRD_R1}, s40, {WS_R1}")
    a(f"s_addc_u32 s{SRD_R1+1}, s41, 0")
    a(f"s_mov_b32 s{SRD_R1+2}, {256*1024}")
    a(f"s_mov_b32 s{SRD_R1+3}, 0x20000")
    a(f"s_add_u32 s{SRD_R2}, s40, {WS_R2}")
    a(f"s_addc_u32 s{SRD_R2+1}, s41, 0")
    a(f"s_mov_b32 s{SRD_R2+2}, {2*128*5120}")
    a(f"s_mov_b32 s{SRD_R2+3}, 0x20000")
    a("s_waitcnt lgkmcnt(0)")
    a("s_barrier")
    stamp(5)
    a(f"s_cmp_lg_u32 s{sW}, 5")
    a("s_cbranch_scc1 L_skip_comb")
    ML = K; OP = K + 16
    a(f"v_mov_b32 v{vT+3}, 0")
    a(f"v_lshlrev_b32 v{vT+4}, 3, v{vLane}")
    for k in range(4):
        a(f"ds_read_b128 v[{ML+4*k}:{ML+4*k+3}], v{vT+3} offset:{LDS_ML+16*k}")
    for w in range(8):
        a(f"ds_read_b64 v[{OP+2*w}:{OP+2*w+1}], v{vT+4} offset:{LDS_OPART+512*w}")
    a("s_waitcnt lgkmcnt(8)")
    MM = X + 2
    a(f"v_max3_f32 v{MM}, v{ML}, v{ML+2}, v{ML+4}")
    a(f"v_max3_f32 v{MM}, v{MM}, v{ML+6}, v{ML+8}")
    a(f"v_max3_f32 v{MM}, v{MM}, v{ML+10}, v{ML+12}")
    a(f"v_max_f32 v{MM}, v{MM}, v{ML+14}")
    for w in range(8):
        a(f"v_sub_f32 v{ML+2*w}, v{ML+2*w}, v{MM}")
    for w in range(8):
        a(f"v_exp_f32 v{ML+2*w}, v{ML+2*w}")
    a("s_waitcnt lgkmcnt(0)")
    G = X + 4
    a(f"v_mul_f32 v{G}, v{ML}, v{OP}")
    a(f"v_mul_f32 v{G+1}, v{ML}, v{OP+1}")
    a(f"v_mul_f32 v{G+2}, v{ML}, v{ML+1}")
    for w in range(1, 8):
        a(f"v_fmac_f32 v{G}, v{ML+2*w}, v{OP+2*w}")
        a(f"v_fmac_f32 v{G+1}, v{ML+2*w}, v{OP+2*w+1}")
        a(f"v_fmac_f32 v{G+2}, v{ML+2*w}, v{ML+2*w+1}")
    a(f"v_rcp_f32 v{G+3}, v{G+2}")
    a(f"v_log_f32 v{G+2}, v{G+2}")
    a(f"s_lshl_b32 s{sT0}, s{sH}, 3")
    a(f"v_mul_f32 v{G}, v{G}, v{G+3}")
    a(f"v_mul_f32 v{G+1}, v{G+1}, v{G+3}")
    a(f"v_add_f32 v{G+2}, v{G+2}, v{MM}")
    a(f"v_mov_b32 v{G+3}, s{sTAG}")
    a(f"s_add_u32 s{sT1}, s{sT0}, s{sJ}")
    a(f"s_lshl_b32 s{sT1}, s{sT1}, 10")
    a(f"v_lshlrev_b32 v{vT+3}, 4, v{vLane}")
    a(f"buffer_store_dwordx4 v[{G}:{G+3}], v{vT+3}, s[{SRD_R1}:{SRD_R1+3}], s{sT1} offen sc1")
    stamp(6)
    GR = K + 32
    a(f"s_mul_i32 s{sT1}, s{sBRT}, 6")
    a(f"s_add_u32 s{sT1}, s{sT0}, s{sT1}")
    a(f"s_lshl_b32 s{sT1}, s{sT1}, 10")
    a(f"s_lshl_b32 s{sT2}, s{sRB}, 8")
    a(f"s_add_u32 s{sT1}, s{sT1}, s{sT2}")
    for i in range(2, 6):
        a(f"v_mov_b32 v{GR+4*i}, 0")
        a(f"v_mov_b32 v{GR+4*i+1}, 0")
        a(f"v_mov_b32 v{GR+4*i+2}, 0xff800000")
        a(f"v_mov_b32 v{GR+4*i+3}, s{sTAG}")
    a(f"s_mov_b32 s{sSPIN}, {cfg.spin_max}")
    a("s_mov_b64 exec, 0xffff")
    a.label("L_poll1")
    a(f"s_mov_b32 s{sT3}, s{sT1}")
    for i in range(6):
        if i == 2:
            a(f"s_cmp_eq_u32 s{sBRT}, 1")
            a("s_cbranch_scc1 L_poll1_w")
        a(f"buffer_load_dwordx4 v[{GR+4*i}:{GR+4*i+3}], v{vT+3}, s[{SRD_R1}:{SRD_R1+3}], s{sT3} offen sc1")
        if i < 5:
            a(f"s_add_u32 s{sT3}, s{sT3}, 1024")
    a.label("L_poll1_w")
    a("s_waitcnt vmcnt(0)")
    a(f"v_xor_b32 v{vT+4}, s{sTAG}, v{GR+3}")
    for i in range(1, 6):
        a(f"v_xor_b32 v{vT+5}, s{sTAG}, v{GR+4*i+3}")
        a(f"v_or_b32 v{vT+4}, v{vT+4}, v{vT+5}")
    a(f"v_cmp_ne_u32 vcc, 0, v{vT+4}")
    a("s_cbranch_vccz L_poll1_done")
    a(f"s_sub_u32 s{sSPIN}, s{sSPIN}, 1")
    a(f"s_cmp_eq_u32 s{sSPIN}, 0")
    a("s_cbranch_scc1 L_poll1_done")
    a(f"s_sleep {cfg.sleep1}")
    a("s_branch L_poll1")
    a.label("L_poll1_done")
    stamp(7)
    a(f"v_max3_f32 v{MM}, v{GR+2}, v{GR+6}, v{GR+10}")
    a(f"v_max3_f32 v{MM}, v{MM}, v{GR+14}, v{GR+18}")
    a(f"v_max_f32 v{MM}, v{MM}, v{GR+22}")
    for i in range(6):
        a(f"v_sub_f32 v{GR+4*i+2}, v{GR+4*i+2}, v{MM}")
    for i in range(6):
        a(f"v_exp_f32 v{GR+4*i+2}, v{GR+4*i+2}")
    a("s_nop 0")
    a(f"v_mul_f32 v{G}, v{GR+2}, v{GR}")
    a(f"v_mul_f32 v{G+1}, v{GR+2}, v{GR+1}")
    a(f"v_mov_b32 v{G+2}, v{GR+2}")
    for i in range(1, 6):
        a(f"v_fmac_f32 v{G}, v{GR+4*i+2}, v{GR+4*i}")
        a(f"v_fmac_f32 v{G+1}, v{GR+4*i+2}, v{GR+4*i+1}")
        a(f"v_add_f32 v{G+2}, v{G+2}, v{GR+4*i+2}")
    a(f"v_rcp_f32 v{G+2}, v{G+2}")
    a(f"s_mov_b32 s{sPERM}, 0x03020302")
    a(f"v_mul_f32 v{G}, v{G}, v{G+2}")
    a(f"v_mul_f32 v{G+1}, v{G+1}, v{G+2}")
    HL = X + 8
    a(f"v_and_b32 v{G+2}, 0xffff0000, v{G}")
    a(f"v_and_b32 v{G+3}, 0xffff0000, v{G+1}")
    a(f"v_sub_f32 v{G+2}, v{G}, v{G+2}")
    a(f"v_sub_f32 v{G+3}, v{G+1}, v{G+3}")
    a(f"v_perm_b32 v{HL}, v{G}, v{G}, s{sPERM}")
    a(f"v_cvt_pk_bf16_f32 v{HL+1}, v{G+2}, v{G+2}")
    a(f"v_perm_b32 v{HL+2}, v{G+1}, v{G+1}, s{sPERM}")
    a(f"v_cvt_pk_bf16_f32 v{HL+3}, v{G+3}, v{G+3}")
    a(f"ds_write_b128 v{vT+3}, v[{HL}:{HL+3}] offset:{LDS_OHL}")
    a("s_mov_b64 exec, -1")
    a("s_waitcnt lgkmcnt(0)")
    a.label("L_skip_comb")
    a("s_barrier")
    stamp(8)
    a(f"s_cmp_ge_u32 s{sW}, 5")
    a("s_cbranch_scc1 L_no_proj")
    a(f"v_bfe_u32 v{vT+3}, v{vLane}, 3, 1")
    a(f"v_lshlrev_b32 v{vT+4}, 3, v{vT+1}")
    a(f"v_lshl_add_u32 v{vT+4}, v{vT+3}, 2, v{vT+4}")
    OS = X + 8
    for t in range(8):
        a(f"ds_read_b32 v{OS+t}, v{vT+4} offset:{LDS_OHL+32*t}")
    a(f"s_lshl_b32 s{sT0}, s{sBRT}, 7")
    a(f"s_lshl_b32 s{sT1}, s{sH}, 2")
    a(f"s_add_u32 s{sT0}, s{sT0}, s{sT1}")
    a(f"s_add_u32 s{sT0}, s{sT0}, s{sRB}")
    a(f"s_mul_i32 s{sT0}, s{sT0}, 5120")
    a(f"s_lshl_b32 s{sT1}, s{sW}, 10")
    a(f"s_add_u32 s{sT0}, s{sT0}, s{sT1}")
    a(f"v_lshlrev_b32 v{vT+5}, 6, v{vT+2}")
    a(f"v_and_b32 v{vT+6}, 1, v{vT+1}")
    a(f"v_lshl_add_u32 v{vT+5}, v{vT+6}, 5, v{vT+5}")
    a(f"v_lshrrev_b32 v{vT+6}, 1, v{vT+1}")
    a(f"v_lshl_add_u32 v{vT+5}, v{vT+6}, 4, v{vT+5}")
    AP = K
    for t in range(8):
        if t % 2 == 0:
            a(f"s_waitcnt lgkmcnt({6 - t})")
        for k in range(4):
            a(f"v_and_b32 v{AP+4*t+k}, v{OS+t}, v{vMask+k}")
    C0 = Q + 16
    a("s_waitcnt vmcnt(0)")
    stamp(9)
    for t in range(8):
        c = "0" if t == 0 else f"v[{C0}:{C0+3}]"
        a(f"v_mfma_f32_16x16x32_bf16 v[{C0}:{C0+3}], v[{AP+4*t}:{AP+4*t+3}], v[{WO+4*t}:{WO+4*t+3}], {c}")
    a(f"s_mov_b32 s{sMASK}, 0")
    a(f"s_mov_b32 s{sMASK+1}, -1")
    a("s_nop 5")
    TT = X + 16
    for r in range(4):
        a(f"v_mov_b32 v{TT+r}, v{C0+r}")
    a("s_nop 0")
    for r in range(4):
        a(f"v_permlane32_swap_b32 v{C0+r}, v{TT+r}")
    a("s_nop 0")
    for r in range(4):
        a(f"v_add_f32 v{C0+r}, v{C0+r}, v{TT+r}")
    PB = X + 20
    a(f"v_cndmask_b32_e64 v{PB}, v{C0}, v{C0+2}, s[{sMASK}:{sMASK+1}]")
    a(f"v_mov_b32 v{PB+1}, s{sTAG}")
    a(f"v_cndmask_b32_e64 v{PB+2}, v{C0+1}, v{C0+3}, s[{sMASK}:{sMASK+1}]")
    a(f"v_mov_b32 v{PB+3}, s{sTAG}")
    a(f"buffer_store_dwordx4 v[{PB}:{PB+3}], v{vT+5}, s[{SRD_R2}:{SRD_R2+3}], s{sT0} offen sc1")
    stamp(10)
    a("s_branch L_fin")
    a.label("L_no_proj")
    a(f"s_cmp_lg_u32 s{sW}, 6")
    a("s_cbranch_scc1 L_fin")
    a("s_cmp_ge_u32 s2, 160")
    a("s_cbranch_scc1 L_fin")
    a("s_cmp_ge_u32 s2, 80")
    a(f"s_cselect_b32 s{sT0}, 1, 0")
    a(f"s_mul_i32 s{sT1}, s{sT0}, 80")
    a(f"s_sub_u32 s{sT1}, s2, s{sT1}")
    a(f"s_mul_i32 s{sT2}, s{sT0}, {128*5120}")
    a(f"s_lshl_b32 s{sT3}, s{sT1}, 6")
    a(f"s_add_u32 s{sT2}, s{sT2}, s{sT3}")
    a(f"v_lshrrev_b32 v{vT+3}, 2, v{vLane}")
    a(f"v_mul_u32_u24 v{vT+3}, 5120, v{vT+3}")
    a(f"v_and_b32 v{vT+4}, 3, v{vLane}")
    a(f"v_lshl_add_u32 v{vT+3}, v{vT+4}, 4, v{vT+3}")
    F = K; FX = K + 32
    a(f"v_and_b32 v{vT+5}, 31, v{vLane}")
    a(f"v_mul_u32_u24 v{vT+5}, {4*5120}, v{vT+5}")
    a(f"v_mov_b32 v{FX+1}, s{sTAG}")
    a(f"s_xor_b32 s{sT3}, s{sTAG}, 1")
    for k in range(8):
        a(f"v_mov_b32 v{F+4*k+1}, s{sT3}")
    a(f"s_mov_b32 s{sSPIN}, {cfg.spin_max}")
    a.label("L_poll2")
    a(f"s_mov_b32 s{sT3}, s{sT2}")
    for k in range(8):
        a(f"v_cmp_ne_u32 vcc, s{sTAG}, v{F+4*k+1}")
        a(f"v_cmp_ne_u32 s[{sMASK}:{sMASK+1}], s{sTAG}, v{F+4*k+3}")
        a(f"s_or_b64 exec, vcc, s[{sMASK}:{sMASK+1}]")
        a(f"s_cbranch_execz L_p2skip{k}")
        a(f"buffer_load_dwordx4 v[{F+4*k}:{F+4*k+3}], v{vT+3}, s[{SRD_R2}:{SRD_R2+3}], s{sT3} offen sc1")
        a.label(f"L_p2skip{k}")
        a("s_mov_b64 exec, -1")
        if k < 7:
            a(f"s_add_u32 s{sT3}, s{sT3}, {16*5120}")
    a("s_cmp_lg_u32 s2, 0")
    a("s_cbranch_scc1 L_poll2_w")
    a(f"s_mov_b32 s{sT3}, {128*5120}")
    a(f"buffer_load_dwordx2 v[{FX}:{FX+1}], v{vT+5}, s[{SRD_R2}:{SRD_R2+3}], s{sT3} offen sc1")
    a.label("L_poll2_w")
    a("s_waitcnt vmcnt(0)")
    a(f"v_xor_b32 v{vT+6}, s{sTAG}, v{FX+1}")
    for k in range(8):
        a(f"v_xor_b32 v{vT+4}, s{sTAG}, v{F+4*k+1}")
        a(f"v_or_b32 v{vT+6}, v{vT+6}, v{vT+4}")
        a(f"v_xor_b32 v{vT+4}, s{sTAG}, v{F+4*k+3}")
        a(f"v_or_b32 v{vT+6}, v{vT+6}, v{vT+4}")
    a(f"v_cmp_ne_u32 vcc, 0, v{vT+6}")
    a("s_cbranch_vccz L_poll2_done")
    a(f"s_sub_u32 s{sSPIN}, s{sSPIN}, 1")
    a(f"s_cmp_eq_u32 s{sSPIN}, 0")
    a("s_cbranch_scc1 L_poll2_done")
    a(f"s_sleep {cfg.sleep2}")
    a("s_branch L_poll2")
    a.label("L_poll2_done")
    stamp(10)
    for k in range(1, 8):
        a(f"v_add_f32 v{F}, v{F}, v{F+4*k}")
        a(f"v_add_f32 v{F+2}, v{F+2}, v{F+4*k+2}")
    for rot in (4, 8):
        a("s_nop 1")
        for r in (F, F + 2):
            a(f"v_add_f32_dpp v{r}, v{r}, v{r} row_ror:{rot} row_mask:0xf bank_mask:0xf")
    for sw in ("v_permlane16_swap_b32", "v_permlane32_swap_b32"):
        for r in (F, F + 2):
            a(f"v_mov_b32 v{r+1}, v{r}")
        a("s_nop 1")
        for r in (F, F + 2):
            a(f"{sw} v{r}, v{r+1}")
        a("s_nop 1")
        for r in (F, F + 2):
            a(f"v_add_f32 v{r}, v{r}, v{r+1}")
    a(f"v_cvt_pk_bf16_f32 v{F}, v{F}, v{F+2}")
    a(f"s_lshl_b32 s{sT0}, s2, 4")
    a(f"v_lshlrev_b32 v{vT+4}, 2, v{vLane}")
    a(f"s_mov_b32 s{SRD_OUT}, s36")
    a(f"s_mov_b32 s{SRD_OUT+1}, s37")
    a(f"s_mov_b32 s{SRD_OUT+2}, 2560")
    a(f"s_mov_b32 s{SRD_OUT+3}, 0x20000")
    a("s_mov_b64 exec, 0xf")
    a(f"buffer_store_dword v{F}, v{vT+4}, s[{SRD_OUT}:{SRD_OUT+3}], s{sT0} offen")
    a("s_cmp_lg_u32 s2, 0")
    a("s_cbranch_scc1 L_fin2")
    a("s_mov_b64 exec, 1")
    a(f"v_mov_b32 v{vT+5}, 0")
    a(f"v_mov_b32 v{vT+6}, s{sTAG}")
    a(f"global_store_dword v{vT+5}, v{vT+6}, s[40:41] sc1")
    a.label("L_fin2")
    a("s_mov_b64 exec, -1")
    a.label("L_fin")
    if cfg.stamps:
        stamp(11)
        a(f"s_lshl_b32 s{sT0}, s2, 3")
        a(f"s_add_u32 s{sT0}, s{sT0}, s{sW}")
        a(f"s_lshl_b32 s{sT0}, s{sT0}, 6")
        a(f"s_add_u32 s{sT0}, s{sT0}, {WS_STAMP}")
        a(f"v_lshlrev_b32 v{vT}, 2, v{vLane}")
        a(f"v_add_u32 v{vT}, s{sT0}, v{vT}")
        a("s_mov_b64 exec, 0xffff")
        a(f"global_store_dword v{vT}, v255, s[40:41]")
    a.label("L_end")
    a("s_endpgm")
    k = kernel_text(NAME + "_kernel", a.text(), 256, 102)
    open(path, "w").write(file_text([(NAME + "_kernel", 256, 512, LDS_BYTES)], [k]))

if __name__ == "__main__":
    cfg = Cfg()
    if "--stamps" in sys.argv: cfg.stamps = True
    if "--nt" in sys.argv: cfg.fq = cfg.fk = cfg.fv = cfg.fo = "nt"
    gen(sys.argv[1], cfg)
```

```python
import sys
from asmgen import *

class Cfg:
    stamps = False
    fq = ""; fk = ""; fv = ""; fo = ""
    spin_max = 400000
    kpart1 = 1
    sleep0 = 1
    sleep1 = 0
    sleep2 = 0
    pat = "iwTj"
    fastpath = True
    pipe2 = True
    prio = True
    dbg0 = False
    thr = 3
    unthr = 3
    abl = ''
    ld2 = 'sc1'
    st2 = 'sc1'
    delay2 = 0
    dbgm = False
    warm = False
    qw = 7
    st0 = 'sc1'

sW = 3; sH = 4; sJ = 5
sT0, sT1, sT2, sT3 = 6, 7, 8, 9
sTAG = 10; sSPIN = 11; sRB = 12; sBRT = 13
sMA = 14; sLA = 15
sMB = 42; sLB = 43
SRD_X = 44; SRD_WQ = 48; SRD_KA = 52; SRD_VA = 56; SRD_KB = 60; SRD_VB = 64
SRD_WO = 44
SRD_R = 48
SRD_OUT = 68
sOFF = 72
sMASK = 76
sPERM = 84
sSAME = 85
sXCC = 86
sSTAMP = 96

vLane = 0
vLin = 1; vKoff = 2; vWq = 3; vWo = 4
vMask = 5
vT = 9
vS = 10; vN = 11
K = 16; V = 96; Q = 176; C = 208; X = 228

LDS_QPART = 0
LDS_QHL = 4096; QHL_STRIDE = 288
LDS_ML = 5248
LDS_OPART = 5632
LDS_OHL = 13824
LDS_CNT = 14336
LDS_BYTES = 16384
WS_R0 = 4096
WS_R1 = 0x80000
WS_R2 = 1 << 20
R2ROW = 2560
WS_REC_BYTES = WS_R2 + 2*128*R2ROW
WS_STAMP = 4 << 20

def gen(path, cfg):
    a = Asm()
    def stamp(idx):
        if cfg.stamps:
            a(f"s_memrealtime s[{sSTAMP}:{sSTAMP+1}]")
            a("s_waitcnt lgkmcnt(0)")
            a(f"v_writelane_b32 v255, s{sSTAMP}, {idx}")
    def soff(T):
        return "0" if T == 0 else f"s{sOFF+T-1}"
    def ands(dst, src, bc):
        for k in range(4):
            a(f"v_and_b32_dpp v{dst+k}, v{src}, v{vMask+k} row_newbcast:{bc} row_mask:0xf bank_mask:0xf")
    def kvloads(reg, srdA, srdB, voff, T0, T1, fl):
        for T in range(T0, T1):
            for i in range(4):
                r = reg + 16*T + 4*i
                if T < 4:
                    a(f"buffer_load_dwordx4 v[{r}:{r+3}], v{voff}, s[{srdA}:{srdA+3}], {soff(T)} offen offset:{1024*i} {fl}")
                else:
                    a(f"buffer_load_dwordx4 v[{r}:{r+3}], v{voff}, s[{srdB}:{srdB+3}], 0 offen offset:{1024*i} {fl}")

    a("s_cmp_ge_u32 s2, 256")
    a("s_cbranch_scc1 L_end")
    if cfg.stamps:
        a(f"s_memrealtime s[{sSTAMP+2}:{sSTAMP+3}]")
    a("s_load_dwordx16 s[16:31], s[0:1], 0")
    a("s_load_dwordx4 s[32:35], s[0:1], 64")
    a("s_load_dwordx4 s[36:39], s[0:1], 80")
    a("s_load_dwordx2 s[40:41], s[0:1], 96")
    a(f"v_lshrrev_b32 v{vT}, 6, v0")
    a(f"v_and_b32 v{vLane}, 63, v0")
    a(f"v_readfirstlane_b32 s{sW}, v{vT}")
    a(f"s_and_b32 s{sH}, s2, 7")
    a(f"s_lshr_b32 s{sJ}, s2, 3")
    a(f"s_and_b32 s{sT0}, s{sJ}, 24")
    a(f"s_add_u32 s{sH}, s{sH}, s{sT0}")
    a(f"s_and_b32 s{sJ}, s{sJ}, 7")
    a(f"v_lshrrev_b32 v{vS}, 4, v{vLane}")
    a(f"v_and_b32 v{vN}, 15, v{vLane}")
    a(f"v_lshlrev_b32 v{vT+3}, 4, v{vN}")
    a(f"v_lshl_add_u32 v{vWq}, v{vS}, 13, v{vT+3}")
    a(f"v_lshlrev_b32 v{vT+4}, 3, v{vN}")
    a(f"v_lshl_add_u32 v{vT+4}, v{vS}, 1, v{vT+4}")
    a(f"s_and_b32 s{sRB}, s{sJ}, 3")
    a(f"s_lshr_b32 s{sBRT}, s{sJ}, 2")
    a(f"s_mul_i32 s{sT0}, s{sRB}, 160")
    a(f"s_mul_i32 s{sT1}, s{sW}, 20")
    a(f"s_add_u32 s{sT0}, s{sT0}, s{sT1}")
    a(f"s_lshl_b32 s{sT1}, s{sT0}, 13")
    a(f"s_lshl_b32 s{sT2}, s{sH}, 8")
    a(f"s_add_u32 s{sT1}, s{sT1}, s{sT2}")
    a(f"s_lshl_b32 s{sT2}, s{sT0}, 1")
    a(f"s_cmp_eq_u32 s{sBRT}, 1")
    a("s_waitcnt lgkmcnt(0)")
    if cfg.stamps:
        a("v_mov_b32 v255, 0")
        a(f"v_writelane_b32 v255, s{sSTAMP+2}, 0")
    a("s_cselect_b64 s[16:17], s[26:27], s[16:17]")
    a("s_cselect_b64 s[22:23], s[32:33], s[22:23]")
    a("s_cselect_b64 s[24:25], s[34:35], s[24:25]")
    a(f"s_add_u32 s{SRD_WQ}, s22, s{sT1}")
    a(f"s_addc_u32 s{SRD_WQ+1}, s23, 0")
    a(f"s_mov_b32 s{SRD_WQ+2}, {19*8192 + 256}")
    a(f"s_mov_b32 s{SRD_WQ+3}, 0x20000")
    a(f"s_add_u32 s{SRD_X}, s16, s{sT2}")
    a(f"s_addc_u32 s{SRD_X+1}, s17, 0")
    a(f"s_sub_u32 s{SRD_X+2}, 1280, s{sT2}")
    a(f"s_mov_b32 s{SRD_X+3}, 0x20000")
    XR0 = X
    a(f"buffer_load_ushort v{XR0}, v{vT+4}, s[{SRD_X}:{SRD_X+3}], 0 offen")
    for t in range(1, 4):
        a(f"s_mov_b32 s{sOFF+t-1}, { {'contig': 4096, 'inter2': 262144, 'iwTj': 32768}[cfg.pat]*t}")
    WQ = Q
    for t in range(5):
        so = "0"
        if t > 0:
            a(f"s_mov_b32 s{sT0}, {32768*t}")
            so = f"s{sT0}"
        a(f"buffer_load_dwordx4 v[{WQ+4*t}:{WQ+4*t+3}], v{vWq}, s[{SRD_WQ}:{SRD_WQ+3}], {so} offen {cfg.fq}")
    a(f"s_load_dword s{sTAG}, s[40:41], 0")
    a(f"s_getreg_b32 s{sXCC}, hwreg(HW_REG_XCC_ID)")
    a(f"s_cmp_lg_u32 s{sW}, 0")
    a("s_cbranch_scc1 L_noinit")
    for k in range(4):
        a(f"v_mov_b32 v{X+4+k}, 0")
    a(f"v_mul_u32_u24 v{vT+5}, {QHL_STRIDE}, v{vLane}")
    a(f"v_mov_b32 v{vT+6}, 0")
    a("s_mov_b64 exec, 0xf")
    a(f"ds_write_b128 v{vT+5}, v[{X+4}:{X+7}] offset:{LDS_QHL+256}")
    a(f"ds_write_b128 v{vT+6}, v[{X+4}:{X+7}] offset:{LDS_CNT}")
    a("s_mov_b64 exec, -1")
    a.label("L_noinit")
    a(f"s_lshl_b32 s{sT0}, s{sH}, 20")
    if cfg.pat == "contig":
        a(f"s_lshl_b32 s{sT2}, s{sJ}, 3")
        a(f"s_add_u32 s{sT2}, s{sT2}, s{sW}")
        a(f"s_lshl_b32 s{sT1}, s{sT2}, 14")
        tstride = 4096
    elif cfg.pat == "inter2":
        a(f"s_lshl_b32 s{sT2}, s{sW}, 3")
        a(f"s_add_u32 s{sT2}, s{sT2}, s{sJ}")
        a(f"s_lshl_b32 s{sT1}, s{sT2}, 12")
        tstride = 262144
    else:
        a(f"s_lshl_b32 s{sT1}, s{sJ}, 17")
        a(f"s_lshl_b32 s{sT2}, s{sW}, 12")
        a(f"s_add_u32 s{sT1}, s{sT1}, s{sT2}")
        a(f"s_lshl_b32 s{sT2}, s{sW}, 3")
        a(f"s_add_u32 s{sT2}, s{sT2}, s{sJ}")
        tstride = 32768
    a(f"s_add_u32 s{sT1}, s{sT1}, s{sT0}")
    a(f"s_lshl_b32 s{sT2}, s{sT2}, 12")
    a(f"s_add_u32 s{sT0}, s{sT0}, s{sT2}")
    a(f"s_add_u32 s{sT0}, s{sT0}, 786432")
    asz = 3*tstride + 4096
    for srd, p, off, sz in ((SRD_KA, 18, sT1, asz), (SRD_VA, 20, sT1, asz), (SRD_KB, 28, sT0, 4096), (SRD_VB, 30, sT0, 4096)):
        a(f"s_add_u32 s{srd}, s{p}, s{off}")
        a(f"s_addc_u32 s{srd+1}, s{p+1}, 0")
        a(f"s_mov_b32 s{srd+2}, {sz}")
        a(f"s_mov_b32 s{srd+3}, 0x20000")
    a(f"v_lshrrev_b32 v{vT+5}, 2, v{vN}")
    a(f"v_and_b32 v{vT+6}, 3, v{vN}")
    a(f"v_lshlrev_b32 v{vKoff}, 8, v{vT+5}")
    a(f"v_lshl_add_u32 v{vKoff}, v{vS}, 6, v{vKoff}")
    a(f"v_lshl_add_u32 v{vKoff}, v{vT+6}, 4, v{vKoff}")
    KP = cfg.kpart1
    a("s_waitcnt lgkmcnt(0)")
    a("s_barrier")
    if cfg.warm:
        SW = 88
        a(f"s_mov_b32 s{SW}, s40"); a(f"s_mov_b32 s{SW+1}, s41"); a(f"s_mov_b32 s{SW+2}, {WS_REC_BYTES}"); a(f"s_mov_b32 s{SW+3}, 0x20000")
        a(f"s_lshl_b32 s{sT0}, s{sBRT}, 7")
        a(f"s_lshl_b32 s{sT1}, s{sH}, 2")
        a(f"s_add_u32 s{sT0}, s{sT0}, s{sT1}")
        a(f"s_add_u32 s{sT0}, s{sT0}, s{sRB}")
        a(f"s_mul_i32 s{sT0}, s{sT0}, 5120")
        a(f"s_add_u32 s{sT0}, s{sT0}, {WS_R2}")
        a(f"s_cmp_eq_u32 s{sW}, 5")
        a("s_cbranch_scc0 L_warm1")
        a(f"v_lshlrev_b32 v{vT+3}, 10, v{vLane}")
        a("s_mov_b64 exec, 31")
        a(f"buffer_load_dword v{X+20}, v{vT+3}, s[{SW}:{SW+3}], s{sT0} offen")
        a("s_mov_b64 exec, -1")
        a.label("L_warm1")
        a(f"s_cmp_eq_u32 s{sW}, 6")
        a("s_cbranch_scc0 L_warm2")
        a("s_cmp_ge_u32 s2, 160")
        a("s_cbranch_scc1 L_warm2")
        a("s_cmp_ge_u32 s2, 80")
        a(f"s_cselect_b32 s{sT0}, {128*5120 + WS_R2}, {WS_R2}") if False else None
        a(f"s_cselect_b32 s{sT0}, 1, 0")
        a(f"s_mul_i32 s{sT0}, s{sT0}, {128*5120}")
        a(f"s_add_u32 s{sT0}, s{sT0}, {WS_R2}")
        a(f"v_mul_u32_u24 v{vT+3}, 5120, v{vLane}")
        a(f"buffer_load_dword v{X+20}, v{vT+3}, s[{SW}:{SW+3}], s{sT0} offen")
        a(f"s_add_u32 s{sT0}, s{sT0}, {64*5120}")
        a(f"buffer_load_dword v{X+21}, v{vT+3}, s[{SW}:{SW+3}], s{sT0} offen")
        a(f"v_mov_b32 v{vT+3}, 0")
        a("s_mov_b64 exec, 1")
        a(f"global_load_dword v{X+20}, v{vT+3}, s[36:37]")
        a("s_mov_b64 exec, -1")
        a("s_waitcnt vmcnt(0)") if False else None
        a.label("L_warm2")
    kvloads(K, SRD_KA, SRD_KB, vKoff, 0, KP, cfg.fk)
    stamp(1)
    a(f"v_lshlrev_b32 v{vLin}, 4, v{vLane}")
    a(f"v_mul_u32_u24 v{vWo}, 1280, v{vS}")
    a(f"v_add_u32 v{vWo}, v{vWo}, v{vT+3}")
    vQA = X + 23
    a(f"v_lshlrev_b32 v{vT+3}, 6, v{vS}")
    a(f"v_lshl_add_u32 v{vT+3}, v{vT+6}, 4, v{vT+3}")
    a(f"v_mov_b32 v{vT+4}, 256")
    for i in range(4):
        pat = 0x000f000f << (4*i)
        a(f"s_mov_b32 s{sMASK+2*i}, 0x{pat:08x}")
        a(f"s_mov_b32 s{sMASK+2*i+1}, 0x{pat:08x}")
    for i in range(4):
        a(f"v_cndmask_b32_e64 v{vQA+i}, v{vT+4}, v{vT+3}, s[{sMASK+2*i}:{sMASK+2*i+1}]")
    a(f"v_and_b32 v{vT+5}, 1, v{vLane}")
    a(f"v_lshlrev_b32 v{vT+5}, 4, v{vT+5}")
    a(f"v_mov_b32 v{vT+6}, 0xffff")
    a(f"v_lshlrev_b32 v{vT+5}, v{vT+5}, v{vT+6}")
    for k, pat in enumerate((0x03030303, 0x0c0c0c0c, 0x30303030, 0xc0c0c0c0)):
        a(f"s_mov_b32 s{sMASK+2*k}, 0x{pat:08x}")
        a(f"s_mov_b32 s{sMASK+2*k+1}, 0x{pat:08x}")
    for k in range(4):
        a(f"v_cndmask_b32_e64 v{vMask+k}, 0, v{vT+5}, s[{sMASK+2*k}:{sMASK+2*k+1}]")
    AOP = [C, C + 4]; QC = C + 8
    a(f"s_waitcnt vmcnt({5+4*KP})")
    a(f"v_lshl_or_b32 v{XR0}, v{XR0}, 16, v{XR0}")
    a("s_nop 1")
    ands(AOP[0], XR0, 0)
    for t in range(5):
        if t + 1 < 5:
            ands(AOP[(t+1) % 2], XR0, t+1)
        else:
            a("s_nop 1")
        a(f"s_waitcnt vmcnt({4*KP + 4 - t})")
        c = "0" if t == 0 else f"v[{QC}:{QC+3}]"
        a(f"v_mfma_f32_16x16x32_bf16 v[{QC}:{QC+3}], v[{AOP[t%2]}:{AOP[t%2]+3}], v[{WQ+4*t}:{WQ+4*t+3}], {c}")
    vPA = X + 22
    a(f"v_lshlrev_b32 v{vPA}, 5, v{vN}")
    a(f"v_lshl_add_u32 v{vPA}, v{vS}, 4, v{vPA}")
    a(f"s_lshl_b32 s{sT0}, s{sW}, 9")
    a(f"v_add_u32 v{vPA}, s{sT0}, v{vPA}")
    a(f"s_mov_b32 s{SRD_R}, s40")
    a(f"s_mov_b32 s{SRD_R+1}, s41")
    a(f"s_mov_b32 s{SRD_R+2}, {WS_REC_BYTES}")
    a(f"s_mov_b32 s{SRD_R+3}, 0x20000")
    a(f"v_mov_b32 v{vT+5}, 0")
    a(f"v_mov_b32 v{vT+6}, 1")
    a("s_mov_b32 exec_hi, 0")
    a("s_nop 0")
    a(f"ds_write_b128 v{vPA}, v[{QC}:{QC+3}] offset:{LDS_QPART}")
    a("s_mov_b64 exec, 1")
    a(f"ds_add_u32 v{vT+5}, v{vT+6} offset:{LDS_CNT}")
    a("s_mov_b64 exec, -1")
    a(f"s_add_u32 s{sTAG}, s{sTAG}, 1")
    stamp(2)
    a(f"s_cmp_lg_u32 s{sW}, {cfg.qw}")
    a("s_cbranch_scc1 L_bulk")
    if cfg.prio: a("s_setprio 3")
    a.label("L_cntq")
    a(f"ds_read_b32 v{vT+6}, v{vT+5} offset:{LDS_CNT}")
    a("s_waitcnt lgkmcnt(0)")
    a(f"v_cmp_ne_u32 vcc, 8, v{vT+6}")
    a("s_cbranch_vccz L_cntq_done")
    a("s_sleep 1")
    a("s_branch L_cntq")
    a.label("L_cntq_done")
    QS = C
    a(f"v_lshlrev_b32 v{vT+3}, 3, v{vLane}")
    for w in range(8):
        a(f"ds_read_b64 v[{QS+2*w}:{QS+2*w+1}], v{vT+3} offset:{LDS_QPART+512*w}")
    a("s_waitcnt lgkmcnt(0)")
    for st in (8, 4, 2):
        for k in range(0, st, 2):
            a(f"v_add_f32 v{QS+k}, v{QS+k}, v{QS+st+k}")
            a(f"v_add_f32 v{QS+k+1}, v{QS+k+1}, v{QS+st+k+1}")
    G = X + 4
    a(f"v_mov_b32 v{G}, v{QS}")
    a(f"v_mov_b32 v{G+1}, v{QS+1}")
    a(f"v_mov_b32 v{G+2}, s{sXCC}")
    a(f"v_mov_b32 v{G+3}, s{sTAG}")
    a(f"s_lshl_b32 s{sT0}, s{sH}, 13")
    a(f"s_add_u32 s{sT0}, s{sT0}, {WS_R0}")
    a(f"s_lshl_b32 s{sT1}, s{sJ}, 10")
    a(f"s_add_u32 s{sT1}, s{sT1}, s{sT0}")
    stamp(16)
    if 'x' in cfg.abl:
        a("s_branch L_abl_flag")
    a(f"buffer_store_dwordx4 v[{G}:{G+3}], v{vLin}, s[{SRD_R}:{SRD_R+3}], s{sT1} offen {cfg.st0}")
    if cfg.stamps and cfg.dbg0:
        a("s_waitcnt vmcnt(0)")
        stamp(17)
    F = Q
    a(f"s_xor_b32 s{sT3}, s{sTAG}, 1")
    for k in range(8):
        a(f"v_mov_b32 v{F+4*k+3}, s{sT3}")
    a(f"s_mov_b32 s{sSPIN}, {cfg.spin_max}")
    a.label("L_poll0")
    a(f"s_mov_b32 s{sT3}, s{sT0}")
    for k in range(8):
        a(f"v_cmp_ne_u32 vcc, s{sTAG}, v{F+4*k+3}")
        a("s_mov_b64 exec, vcc")
        a(f"s_cbranch_execz L_p0skip{k}")
        a(f"buffer_load_dwordx4 v[{F+4*k}:{F+4*k+3}], v{vLin}, s[{SRD_R}:{SRD_R+3}], s{sT3} offen sc1")
        a.label(f"L_p0skip{k}")
        a("s_mov_b64 exec, -1")
        if k < 7:
            a(f"s_add_u32 s{sT3}, s{sT3}, 1024")
    a("s_waitcnt vmcnt(0)")
    a(f"v_xor_b32 v{vT+6}, s{sTAG}, v{F+3}")
    for k in range(1, 8):
        a(f"v_xor_b32 v{vT+4}, s{sTAG}, v{F+4*k+3}")
        a(f"v_or_b32 v{vT+6}, v{vT+6}, v{vT+4}")
    a(f"v_cmp_ne_u32 vcc, 0, v{vT+6}")
    a("s_cbranch_vccz L_poll0_done")
    a(f"s_sub_u32 s{sSPIN}, s{sSPIN}, 1")
    a(f"s_cmp_eq_u32 s{sSPIN}, 0")
    a("s_cbranch_scc1 L_poll0_done")
    a(f"s_sleep {cfg.sleep0}")
    a("s_branch L_poll0")
    a.label("L_poll0_done")
    stamp(18)
    if cfg.stamps:
        a(f"s_sub_u32 s{sSTAMP+4}, {cfg.spin_max}, s{sSPIN}")
        a(f"v_writelane_b32 v255, s{sSTAMP+4}, 14")
    a(f"v_xor_b32 v{vT+6}, s{sXCC}, v{F+2}")
    for k in range(1, 8):
        a(f"v_xor_b32 v{vT+4}, s{sXCC}, v{F+4*k+2}")
        a(f"v_or_b32 v{vT+6}, v{vT+6}, v{vT+4}")
    a(f"v_cmp_ne_u32 vcc, 0, v{vT+6}")
    a(f"s_cmp_eq_u64 vcc, 0")
    a(f"s_cselect_b32 s{sSAME}, {1 if cfg.fastpath else 0}, 0")
    a(f"s_mov_b32 s{sT0}, 0x3e0293ee")
    a(f"s_mov_b32 s{sPERM}, 0x07060302")
    a(f"v_lshlrev_b32 v{vT+3}, 2, v{vLane}")
    for br in range(2):
        f = F + 16*br
        for e in (0, 1):
            a(f"v_add_f32 v{f+e}, v{f+e}, v{f+4+e}")
            a(f"v_add_f32 v{f+8+e}, v{f+8+e}, v{f+12+e}")
        for e in (0, 1):
            a(f"v_add_f32 v{f+e}, v{f+e}, v{f+8+e}")
        for e in (0, 1):
            a(f"v_mul_f32 v{f+e}, s{sT0}, v{f+e}")
        a(f"v_perm_b32 v{f+4}, v{f+1}, v{f}, s{sPERM}")
        a(f"v_and_b32 v{f+5}, 0xffff0000, v{f}")
        a(f"v_and_b32 v{f+6}, 0xffff0000, v{f+1}")
        a(f"v_sub_f32 v{f+5}, v{f}, v{f+5}")
        a(f"v_sub_f32 v{f+6}, v{f+1}, v{f+6}")
        a(f"v_cvt_pk_bf16_f32 v{f+5}, v{f+5}, v{f+6}")
        a(f"ds_write_b32 v{vT+3}, v{f+4} offset:{LDS_QHL + (2*br)*QHL_STRIDE}")
        a(f"ds_write_b32 v{vT+3}, v{f+5} offset:{LDS_QHL + (2*br+1)*QHL_STRIDE}")
    a.label("L_abl_flag")
    a(f"v_mov_b32 v{vT+5}, 1")
    a(f"v_mov_b32 v{vT+6}, s{sSAME}")
    a(f"v_mov_b32 v{vT+4}, 0")
    a("s_mov_b64 exec, 1")
    a(f"ds_write_b64 v{vT+4}, v[{vT+5}:{vT+6}] offset:{LDS_CNT+8}")
    a("s_mov_b64 exec, -1")
    a.label("L_bulk")
    if cfg.prio: a("s_setprio 0")
    def thr():
        a(f"s_waitcnt vmcnt({cfg.thr})")
    a(f"s_cmp_eq_u32 s{sW}, {cfg.qw}")
    for T in range(KP, 5):
        a(f"s_cbranch_scc1 L_nothr{T}")
        thr()
        a.label(f"L_nothr{T}")
        kvloads(K, SRD_KA, SRD_KB, vKoff, T, T + 1, cfg.fk)
    stamp(3)
    thr()
    kvloads(V, SRD_VA, SRD_VB, vLin, 0, 1, cfg.fv)
    a(f"v_mov_b32 v{vT+4}, 0")
    a.label("L_flagq")
    a(f"ds_read_b64 v[{vT+5}:{vT+6}], v{vT+4} offset:{LDS_CNT+8}")
    a("s_waitcnt lgkmcnt(0)")
    a(f"v_cmp_ne_u32 vcc, 1, v{vT+5}")
    a("s_cbranch_vccz L_flagq_done")
    a("s_sleep 2")
    a("s_branch L_flagq")
    a.label("L_flagq_done")
    a(f"v_readfirstlane_b32 s{sSAME}, v{vT+6}")
    stamp(4)
    def consts(br):
        for i in range(4):
            a(f"ds_read_b128 v[{Q+8*i}:{Q+8*i+3}], v{vQA+i} offset:{LDS_QHL + (2*br)*QHL_STRIDE}")
            a(f"ds_read_b128 v[{Q+8*i+4}:{Q+8*i+7}], v{vQA+i} offset:{LDS_QHL + (2*br+1)*QHL_STRIDE}")
    def qk(T):
        c = C + 4*T
        for i in range(4):
            r = K + 16*T + 4*i
            cin = "0" if i == 0 else f"v[{c}:{c+3}]"
            if 'q' in cfg.abl: continue
            a(f"v_mfma_f32_16x16x32_bf16 v[{c}:{c+3}], v[{r}:{r+3}], v[{Q+8*i}:{Q+8*i+3}], {cin}")
            a(f"v_mfma_f32_16x16x32_bf16 v[{c}:{c+3}], v[{r}:{r+3}], v[{Q+8*i+4}:{Q+8*i+7}], v[{c}:{c+3}]")
    consts(0)
    a("s_waitcnt vmcnt(8) lgkmcnt(0)")
    for T in range(4):
        qk(T)
        if T == 3:
            consts(1)
        if T + 1 < cfg.unthr: thr()
        kvloads(V, SRD_VA, SRD_VB, vLin, T + 1, T + 2, cfg.fv)
    a(f"s_waitcnt vmcnt(16) lgkmcnt(0)")
    qk(4)
    a(f"s_lshl_b32 s{sT1}, s{sH}, 7")
    a(f"s_lshl_b32 s{sT2}, s{sRB}, 5")
    a(f"s_add_u32 s{sT1}, s{sT1}, s{sT2}")
    a(f"s_mul_i32 s{sT1}, s{sT1}, 1280")
    a(f"s_lshl_b32 s{sT0}, s{sW}, 8")
    a(f"s_add_u32 s{sT0}, s{sT0}, s{sT1}")
    a(f"s_add_u32 s{SRD_WO}, s24, s{sT0}")
    a(f"s_addc_u32 s{SRD_WO+1}, s25, 0")
    a(f"s_cmp_lt_u32 s{sW}, 5")
    a(f"s_cselect_b32 s{SRD_WO+2}, {31*1280 + 256}, 0")
    a(f"s_mov_b32 s{SRD_WO+3}, 0x20000")
    WO = K
    def woloads(t0, t1):
        for t in range(t0, t1):
            r = WO + 4*t
            so = "0"
            if t > 0:
                a(f"s_movk_i32 s{sT1}, {5120*t}" if 5120*t < 32768 else f"s_mov_b32 s{sT1}, {5120*t}")
                so = f"s{sT1}"
            a(f"buffer_load_dwordx4 v[{r}:{r+3}], v{vWo}, s[{SRD_WO}:{SRD_WO+3}], {so} offen {cfg.fo}")
    a(f"s_mov_b32 s{sMASK}, 0xaaaaaaaa"); a(f"s_mov_b32 s{sMASK+1}, 0xaaaaaaaa")
    a(f"s_mov_b32 s{sMASK+2}, 0xcccccccc"); a(f"s_mov_b32 s{sMASK+3}, 0xcccccccc")
    T0 = X; T1 = X + 5; SC = X + 10; PK = X + 15; MX = X + 20
    for T in range(5):
        c = C + 4*T
        a(f"v_cndmask_b32_e64 v{T0+T}, v{c}, v{c+1}, s[{sMASK}:{sMASK+1}]")
        a(f"v_cndmask_b32_e64 v{T1+T}, v{c+2}, v{c+3}, s[{sMASK}:{sMASK+1}]")
    for T in range(5):
        a(f"v_cndmask_b32_e64 v{SC+T}, v{T0+T}, v{T1+T}, s[{sMASK+2}:{sMASK+3}]")
    for T in range(5):
        a(f"v_add_f32_dpp v{SC+T}, v{SC+T}, v{SC+T} quad_perm:[1,0,3,2] row_mask:0xf bank_mask:0xf")
    for T in range(5):
        a(f"v_add_f32_dpp v{SC+T}, v{SC+T}, v{SC+T} quad_perm:[2,3,0,1] row_mask:0xf bank_mask:0xf")
    a(f"v_max3_f32 v{MX}, v{SC}, v{SC+1}, v{SC+2}")
    a(f"v_mov_b32 v{MX+1}, v{SC+4}")
    a(f"v_max_f32 v{MX}, v{MX}, v{SC+3}")
    def wave_reduce2(op, r0, r1, s0, s1):
        for mod in ("row_ror:4 row_mask:0xf", "row_ror:8 row_mask:0xf", "row_bcast:15 row_mask:0xa", "row_bcast:31 row_mask:0xc"):
            a("s_nop 0")
            a(f"{op}_dpp v{r1}, v{r1}, v{r1} {mod} bank_mask:0xf")
            a(f"{op}_dpp v{r0}, v{r0}, v{r0} {mod} bank_mask:0xf")
        a(f"v_readlane_b32 s{s1}, v{r1}, 63")
        a(f"v_readlane_b32 s{s0}, v{r0}, 63")
        a("s_nop 1")
    a("s_nop 0")
    wave_reduce2("v_max_f32", MX, MX + 1, sMA, sMB)
    for T in range(5):
        a(f"v_subrev_f32 v{SC+T}, s{sMA if T < 4 else sMB}, v{SC+T}")
    for T in range(5):
        a(f"v_exp_f32 v{SC+T}, v{SC+T}")
    a("s_nop 0")
    for T in range(5):
        a(f"v_cvt_pk_bf16_f32 v{PK+T}, v{SC+T}, v{SC+T}")
    for T in range(5):
        a(f"v_and_b32 v{SC+T}, 0xffff0000, v{PK+T}")
    a(f"v_add_f32 v{SC}, v{SC}, v{SC+1}")
    a(f"v_add_f32 v{SC+2}, v{SC+2}, v{SC+3}")
    a(f"v_add_f32 v{SC}, v{SC}, v{SC+2}")
    a("s_nop 0")
    wave_reduce2("v_add_f32", SC, SC + 4, sLA, sLB)
    AO = [Q, Q + 4]; OCA = Q + 8; OCB = Q + 12
    steps = [(T, t) for T in range(5) for t in range(4)]
    ands(AO[0], PK + 0, 0)
    for idx, (T, t) in enumerate(steps):
        if idx + 1 < len(steps):
            T2, t2 = steps[idx+1]
            ands(AO[(idx+1) % 2], PK + T2, 4*t2)
        else:
            a("s_nop 1")
        if idx == 0:
            a("s_waitcnt vmcnt(4)")
        if idx == 16:
            thr()
            woloads(0, 8)
            stamp(5)
            a("s_waitcnt vmcnt(8)")
        r = V + 16*T + 4*t
        oc = OCA if T < 4 else OCB
        c = "0" if idx in (0, 16) else f"v[{oc}:{oc+3}]"
        a(f"v_mfma_f32_16x16x32_bf16 v[{oc}:{oc+3}], v[{AO[idx%2]}:{AO[idx%2]+3}], v[{r}:{r+3}], {c}")
    a(f"s_lshl_b32 s{sT0}, s{sW}, 3")
    a(f"v_mov_b32 v{vT+6}, s{sT0}")
    a(f"v_mov_b32 v{X}, s{sMA}")
    a(f"v_mov_b32 v{X+1}, s{sLA}")
    a(f"v_mov_b32 v{X+2}, s{sMB}")
    a(f"v_mov_b32 v{X+3}, s{sLB}")
    a("s_mov_b64 exec, 1")
    a(f"ds_write_b64 v{vT+6}, v[{X}:{X+1}] offset:{LDS_ML}")
    a(f"ds_write_b64 v{vT+6}, v[{X+2}:{X+3}] offset:{LDS_ML+64}")
    a("s_mov_b32 exec_lo, -1")
    a(f"ds_write_b128 v{vPA}, v[{OCA}:{OCA+3}] offset:{LDS_OPART}")
    a(f"ds_write_b128 v{vPA}, v[{OCB}:{OCB+3}] offset:{LDS_OPART+4096}")
    a("s_mov_b64 exec, -1")
    a("s_waitcnt lgkmcnt(0)")
    a("s_barrier")
    stamp(6)
    if 'e' in cfg.abl:
        a("s_waitcnt vmcnt(0)")
        stamp(9)
        a("s_branch L_fin")
    a(f"s_cmp_lt_u32 s{sW}, 5")
    a("s_cbranch_scc1 L_skip_comb")
    a(f"s_cmp_eq_u32 s{sW}, 7")
    a("s_cbranch_scc1 L_poll1_setup")
    ML = V; OP = V + 16
    a(f"s_sub_u32 s{sT2}, s{sW}, 5")
    a(f"s_lshl_b32 s{sT0}, s{sT2}, 6")
    a(f"v_mov_b32 v{vT+3}, s{sT0}")
    a(f"s_lshl_b32 s{sT0}, s{sT2}, 12")
    a(f"v_lshlrev_b32 v{vT+4}, 3, v{vLane}")
    a(f"v_add_u32 v{vT+4}, s{sT0}, v{vT+4}")
    for k in range(4):
        a(f"ds_read_b128 v[{ML+4*k}:{ML+4*k+3}], v{vT+3} offset:{LDS_ML+16*k}")
    for w in range(8):
        a(f"ds_read_b64 v[{OP+2*w}:{OP+2*w+1}], v{vT+4} offset:{LDS_OPART+512*w}")
    a("s_waitcnt lgkmcnt(8)")
    MM = X + 2
    a(f"v_max3_f32 v{MM}, v{ML}, v{ML+2}, v{ML+4}")
    a(f"v_max3_f32 v{MM}, v{MM}, v{ML+6}, v{ML+8}")
    a(f"v_max3_f32 v{MM}, v{MM}, v{ML+10}, v{ML+12}")
    a(f"v_max_f32 v{MM}, v{MM}, v{ML+14}")
    for w in range(8):
        a(f"v_sub_f32 v{ML+2*w}, v{ML+2*w}, v{MM}")
    for w in range(8):
        a(f"v_exp_f32 v{ML+2*w}, v{ML+2*w}")
    a("s_waitcnt lgkmcnt(0)")
    G = X + 4
    a(f"v_mul_f32 v{G}, v{ML}, v{OP}")
    a(f"v_mul_f32 v{G+1}, v{ML}, v{OP+1}")
    a(f"v_mul_f32 v{G+2}, v{ML}, v{ML+1}")
    for w in range(1, 8):
        a(f"v_fmac_f32 v{G}, v{ML+2*w}, v{OP+2*w}")
        a(f"v_fmac_f32 v{G+1}, v{ML+2*w}, v{OP+2*w+1}")
        a(f"v_fmac_f32 v{G+2}, v{ML+2*w}, v{ML+2*w+1}")
    a(f"v_rcp_f32 v{G+3}, v{G+2}")
    a(f"v_log_f32 v{G+2}, v{G+2}")
    a(f"s_lshl_b32 s{sT0}, s{sH}, 1")
    a(f"s_add_u32 s{sT0}, s{sT0}, s{sT2}")
    a(f"s_lshl_b32 s{sT0}, s{sT0}, 3")
    a(f"v_mul_f32 v{G}, v{G}, v{G+3}")
    a(f"v_mul_f32 v{G+1}, v{G+1}, v{G+3}")
    a(f"v_add_f32 v{G+2}, v{G+2}, v{MM}")
    a(f"v_mov_b32 v{G+3}, s{sTAG}")
    a(f"s_add_u32 s{sT0}, s{sT0}, s{sJ}")
    a(f"s_lshl_b32 s{sT0}, s{sT0}, 10")
    a(f"s_add_u32 s{sT0}, s{sT0}, {WS_R1}")
    a(f"s_cmp_eq_u32 s{sSAME}, 1")
    a("s_cbranch_scc1 L_pub1_fast")
    a(f"buffer_store_dwordx4 v[{G}:{G+3}], v{vLin}, s[{SRD_R}:{SRD_R+3}], s{sT0} offen sc1")
    a("s_branch L_pub1_done")
    a.label("L_pub1_fast")
    a(f"buffer_store_dwordx4 v[{G}:{G+3}], v{vLin}, s[{SRD_R}:{SRD_R+3}], s{sT0} offen")
    a.label("L_pub1_done")
    stamp(7)
    if cfg.stamps:
        a("s_waitcnt vmcnt(0)")
        stamp(19)
    a("s_branch L_skip_comb")
    a.label("L_poll1_setup")
    GR = V
    a(f"s_lshl_b32 s{sT1}, s{sH}, 1")
    a(f"s_add_u32 s{sT1}, s{sT1}, s{sBRT}")
    a(f"s_lshl_b32 s{sT1}, s{sT1}, 13")
    a(f"s_lshl_b32 s{sT2}, s{sRB}, 8")
    a(f"s_add_u32 s{sT1}, s{sT1}, s{sT2}")
    a(f"s_add_u32 s{sT1}, s{sT1}, {WS_R1}")
    a(f"s_mov_b32 s{sSPIN}, {cfg.spin_max}")
    a("s_mov_b64 exec, 0xffff")
    a.label("L_poll1")
    a(f"s_mov_b32 s{sT3}, s{sT1}")
    for i in range(8):
        a(f"buffer_load_dwordx4 v[{GR+4*i}:{GR+4*i+3}], v{vLin}, s[{SRD_R}:{SRD_R+3}], s{sT3} offen sc1")
        if i < 7:
            a(f"s_add_u32 s{sT3}, s{sT3}, 1024")
    a("s_waitcnt vmcnt(0)")
    a(f"v_xor_b32 v{vT+4}, s{sTAG}, v{GR+3}")
    for i in range(1, 8):
        a(f"v_xor_b32 v{vT+5}, s{sTAG}, v{GR+4*i+3}")
        a(f"v_or_b32 v{vT+4}, v{vT+4}, v{vT+5}")
    a(f"v_cmp_ne_u32 vcc, 0, v{vT+4}")
    a("s_cbranch_vccz L_poll1_done")
    a(f"s_sub_u32 s{sSPIN}, s{sSPIN}, 1")
    a(f"s_cmp_eq_u32 s{sSPIN}, 0")
    a("s_cbranch_scc1 L_poll1_done")
    if cfg.sleep1: a(f"s_sleep {cfg.sleep1}")
    a("s_branch L_poll1")
    a.label("L_poll1_done")
    if cfg.stamps:
        a(f"s_sub_u32 s{sSTAMP+4}, {cfg.spin_max}, s{sSPIN}")
        a(f"v_writelane_b32 v255, s{sSTAMP+4}, 14")
    stamp(7)
    MM = X + 2; G = X + 4
    a(f"v_max3_f32 v{MM}, v{GR+2}, v{GR+6}, v{GR+10}")
    a(f"v_max3_f32 v{MM}, v{MM}, v{GR+14}, v{GR+18}")
    a(f"v_max3_f32 v{MM}, v{MM}, v{GR+22}, v{GR+26}")
    a(f"v_max_f32 v{MM}, v{MM}, v{GR+30}")
    for i in range(8):
        a(f"v_sub_f32 v{GR+4*i+2}, v{GR+4*i+2}, v{MM}")
    for i in range(8):
        a(f"v_exp_f32 v{GR+4*i+2}, v{GR+4*i+2}")
    a("s_nop 0")
    a(f"v_mul_f32 v{G}, v{GR+2}, v{GR}")
    a(f"v_mul_f32 v{G+1}, v{GR+2}, v{GR+1}")
    a(f"v_mov_b32 v{G+2}, v{GR+2}")
    for i in range(1, 8):
        a(f"v_fmac_f32 v{G}, v{GR+4*i+2}, v{GR+4*i}")
        a(f"v_fmac_f32 v{G+1}, v{GR+4*i+2}, v{GR+4*i+1}")
        a(f"v_add_f32 v{G+2}, v{G+2}, v{GR+4*i+2}")
    a(f"v_rcp_f32 v{G+2}, v{G+2}")
    a(f"s_mov_b32 s{sPERM}, 0x03020302")
    a(f"v_mul_f32 v{G}, v{G}, v{G+2}")
    a(f"v_mul_f32 v{G+1}, v{G+1}, v{G+2}")
    HL = X + 8
    a(f"v_and_b32 v{G+2}, 0xffff0000, v{G}")
    a(f"v_and_b32 v{G+3}, 0xffff0000, v{G+1}")
    a(f"v_sub_f32 v{G+2}, v{G}, v{G+2}")
    a(f"v_sub_f32 v{G+3}, v{G+1}, v{G+3}")
    a(f"v_perm_b32 v{HL}, v{G}, v{G}, s{sPERM}")
    a(f"v_cvt_pk_bf16_f32 v{HL+1}, v{G+2}, v{G+2}")
    a(f"v_perm_b32 v{HL+2}, v{G+1}, v{G+1}, s{sPERM}")
    a(f"v_cvt_pk_bf16_f32 v{HL+3}, v{G+3}, v{G+3}")
    a(f"ds_write_b128 v{vLin}, v[{HL}:{HL+3}] offset:{LDS_OHL}")
    a("s_mov_b64 exec, -1")
    a("s_waitcnt lgkmcnt(0)")
    a.label("L_skip_comb")
    a("s_barrier")
    stamp(8)
    a(f"s_cmp_ge_u32 s{sW}, 5")
    a("s_cbranch_scc1 L_no_proj")
    a(f"v_bfe_u32 v{vT+3}, v{vLane}, 3, 1")
    a(f"v_lshlrev_b32 v{vT+4}, 3, v{vS}")
    a(f"v_lshl_add_u32 v{vT+4}, v{vT+3}, 2, v{vT+4}")
    OS = X + 8
    for t in range(8):
        a(f"ds_read_b32 v{OS+t}, v{vT+4} offset:{LDS_OHL+32*t}")
    a(f"s_lshl_b32 s{sT0}, s{sBRT}, 7")
    a(f"s_lshl_b32 s{sT1}, s{sH}, 2")
    a(f"s_add_u32 s{sT0}, s{sT0}, s{sT1}")
    a(f"s_add_u32 s{sT0}, s{sT0}, s{sRB}")
    a(f"s_mul_i32 s{sT0}, s{sT0}, {R2ROW}")
    a(f"s_lshl_b32 s{sT1}, s{sW}, 9")
    a(f"s_add_u32 s{sT0}, s{sT0}, s{sT1}")
    a(f"s_add_u32 s{sT0}, s{sT0}, {WS_R2}")
    TB = sMASK + 2
    a(f"s_lshr_b32 s{TB+1}, s{sTAG}, 8")
    a(f"s_lshr_b32 s{TB+2}, s{sTAG}, 16")
    a(f"s_lshr_b32 s{TB+3}, s{sTAG}, 24")
    a(f"v_mov_b32 v{vT+5}, 0xff")
    AP = V
    for t in range(8):
        if t % 2 == 0:
            a(f"s_waitcnt lgkmcnt({6 - t})")
        for k in range(4):
            a(f"v_and_b32 v{AP+4*t+k}, v{OS+t}, v{vMask+k}")
    C0 = Q + 16
    a("s_waitcnt vmcnt(0)")
    stamp(9)
    for t in range(8):
        c = "0" if t == 0 else f"v[{C0}:{C0+3}]"
        a(f"v_mfma_f32_16x16x32_bf16 v[{C0}:{C0+3}], v[{AP+4*t}:{AP+4*t+3}], v[{WO+4*t}:{WO+4*t+3}], {c}")
    a("s_nop 7")
    TT = X + 16
    for r in range(4):
        a(f"v_mov_b32 v{TT+r}, v{C0+r}")
    a("s_nop 0")
    for r in range(4):
        a(f"v_permlane32_swap_b32 v{C0+r}, v{TT+r}")
    a("s_nop 0")
    for r in range(4):
        a(f"v_add_f32 v{C0+r}, v{C0+r}, v{TT+r}")
    PB = X + 4
    for r in range(4):
        src = sTAG if r == 0 else TB + r
        a(f"v_bfi_b32 v{PB+r}, v{vT+5}, s{src}, v{C0+r}")
    a("s_mov_b32 exec_hi, 0")
    a(f"buffer_store_dwordx4 v[{PB}:{PB+3}], v{vLin}, s[{SRD_R}:{SRD_R+3}], s{sT0} offen {cfg.st2}")
    a("s_mov_b64 exec, -1")
    stamp(10)
    if cfg.stamps:
        a("s_waitcnt vmcnt(0)")
        stamp(19)
    a("s_branch L_fin")
    a.label("L_no_proj")
    a(f"s_cmp_lg_u32 s{sW}, 6")
    a("s_cbranch_scc1 L_fin")
    a("s_cmp_ge_u32 s2, 80")
    a("s_cbranch_scc1 L_fin")
    a(f"s_and_b32 s{sT0}, s2, 7")
    a(f"s_mul_i32 s{sT0}, s{sT0}, 10")
    a(f"s_lshr_b32 s{sT1}, s2, 3")
    a(f"s_add_u32 s{sT0}, s{sT0}, s{sT1}")
    a(f"s_cmp_ge_u32 s{sT0}, 40")
    a(f"s_cselect_b32 s{sBRT}, 1, 0")
    a(f"s_mul_i32 s{sT1}, s{sBRT}, 40")
    a(f"s_sub_u32 s{sRB}, s{sT0}, s{sT1}")
    a(f"s_mul_i32 s{sT2}, s{sBRT}, {128*R2ROW}")
    a(f"s_lshl_b32 s{sT3}, s{sRB}, 6")
    a(f"s_add_u32 s{sT2}, s{sT2}, s{sT3}")
    a(f"s_add_u32 s{sT2}, s{sT2}, {WS_R2}")
    a(f"v_lshrrev_b32 v{vT+3}, 2, v{vLane}")
    a(f"v_mul_u32_u24 v{vT+3}, {R2ROW}, v{vT+3}")
    a(f"v_and_b32 v{vT+4}, 3, v{vLane}")
    a(f"v_lshl_add_u32 v{vT+3}, v{vT+4}, 4, v{vT+3}")
    SA = K; SB = K + 32; F = V
    MK = 52
    for k in range(8):
        a(f"s_mov_b64 s[{MK+2*k}:{MK+2*k+1}], -1")
    a(f"s_mov_b32 s{sPERM}, 0x0c0c0400")
    if cfg.stamps: a(f"s_mov_b32 s{sSTAMP+5}, 20")
    def loopstamp():
        if cfg.stamps:
            a(f"s_memrealtime s[{sSTAMP}:{sSTAMP+1}]")
            a("s_waitcnt lgkmcnt(0)")
            a(f"s_mov_b32 m0, s{sSTAMP+5}")
            a("s_nop 3")
            a(f"v_writelane_b32 v255, s{sSTAMP}, m0")
            a(f"s_add_u32 s{sSTAMP+5}, s{sSTAMP+5}, 1")
            a(f"s_min_u32 s{sSTAMP+5}, s{sSTAMP+5}, 31")
    def issue(S):
        a(f"s_mov_b32 s{sT3}, s{sT2}")
        for k in range(8):
            a(f"s_mov_b64 exec, s[{MK+2*k}:{MK+2*k+1}]")
            a(f"buffer_load_dwordx4 v[{S+4*k}:{S+4*k+3}], v{vT+3}, s[{SRD_R}:{SRD_R+3}], s{sT3} offen {cfg.ld2}")
            if k < 7:
                a(f"s_add_u32 s{sT3}, s{sT3}, {16*R2ROW}")
        a("s_mov_b64 exec, -1")
    def merge(S):
        for k in range(8):
            a(f"v_perm_b32 v{X+2*k}, v{S+4*k+1}, v{S+4*k}, s{sPERM}")
            a(f"v_perm_b32 v{X+2*k+1}, v{S+4*k+3}, v{S+4*k+2}, s{sPERM}")
        for k in range(8):
            a(f"v_lshl_or_b32 v{X+2*k}, v{X+2*k+1}, 16, v{X+2*k}")
        for k in range(8):
            a(f"v_cmp_eq_u32 vcc, s{sTAG}, v{X+2*k}")
            a(f"s_and_b64 exec, vcc, s[{MK+2*k}:{MK+2*k+1}]")
            a(f"s_andn2_b64 s[{MK+2*k}:{MK+2*k+1}], s[{MK+2*k}:{MK+2*k+1}], vcc")
            for r in range(4):
                a(f"v_and_b32 v{F+4*k+r}, 0xffffff00, v{S+4*k+r}")
            a("s_mov_b64 exec, -1")
        a(f"s_or_b64 s[{MK+16}:{MK+17}], s[{MK}:{MK+1}], s[{MK+2}:{MK+3}]")
        for k in range(2, 8):
            a(f"s_or_b64 s[{MK+16}:{MK+17}], s[{MK+16}:{MK+17}], s[{MK+2*k}:{MK+2*k+1}]")
    a(f"s_not_b32 s{sT3}, s{sTAG}")
    for k in range(8):
        a(f"v_mov_b32 v{SA+4*k}, s{sT3}")
        a(f"v_mov_b32 v{SB+4*k}, s{sT3}")
    a(f"s_mov_b32 s{sSPIN}, {cfg.spin_max}")
    issue(SB)
    a.label("L_poll2")
    issue(SA)
    a("s_waitcnt vmcnt(8)")
    loopstamp()
    merge(SB)
    a("s_cbranch_scc0 L_poll2_done")
    issue(SB)
    a("s_waitcnt vmcnt(8)")
    loopstamp()
    merge(SA)
    a("s_cbranch_scc0 L_poll2_done")
    a(f"s_sub_u32 s{sSPIN}, s{sSPIN}, 1")
    a(f"s_cmp_eq_u32 s{sSPIN}, 0")
    a("s_cbranch_scc0 L_poll2")
    a.label("L_poll2_done")
    if cfg.stamps:
        a(f"s_sub_u32 s{sSTAMP+4}, {cfg.spin_max}, s{sSPIN}")
        a(f"v_writelane_b32 v255, s{sSTAMP+4}, 14")
    stamp(10)
    for st in (16, 8, 4):
        for k in range(st):
            a(f"v_add_f32 v{F+k}, v{F+k}, v{F+st+k}")
    for rot in (4, 8):
        a("s_nop 0")
        for r in range(4):
            a(f"v_add_f32_dpp v{F+r}, v{F+r}, v{F+r} row_ror:{rot} row_mask:0xf bank_mask:0xf")
    for sw in ("v_permlane16_swap_b32", "v_permlane32_swap_b32"):
        for r in range(4):
            a(f"v_mov_b32 v{F+4+r}, v{F+r}")
        a("s_nop 0")
        for r in range(4):
            a(f"{sw} v{F+r}, v{F+4+r}")
        a("s_nop 0")
        for r in range(4):
            a(f"v_add_f32 v{F+r}, v{F+r}, v{F+4+r}")
    a(f"v_cvt_pk_bf16_f32 v{F+8}, v{F}, v{F+1}")
    a(f"v_cvt_pk_bf16_f32 v{F+9}, v{F+2}, v{F+3}")
    a(f"s_mul_i32 s{sT0}, s{sBRT}, 1280")
    a(f"s_lshr_b32 s{sT1}, s{sRB}, 3")
    a(f"s_lshl_b32 s{sT1}, s{sT1}, 8")
    a(f"s_add_u32 s{sT0}, s{sT0}, s{sT1}")
    a(f"s_and_b32 s{sT1}, s{sRB}, 3")
    a(f"s_lshl_b32 s{sT1}, s{sT1}, 6")
    a(f"s_add_u32 s{sT0}, s{sT0}, s{sT1}")
    a(f"s_bfe_u32 s{sT1}, s{sRB}, 0x10002")
    a(f"s_lshl_b32 s{sT1}, s{sT1}, 3")
    a(f"s_add_u32 s{sT0}, s{sT0}, s{sT1}")
    a(f"v_lshlrev_b32 v{vT+4}, 4, v{vLane}")
    a(f"s_mov_b32 s{SRD_OUT}, s36")
    a(f"s_mov_b32 s{SRD_OUT+1}, s37")
    a(f"s_mov_b32 s{SRD_OUT+2}, 2560")
    a(f"s_mov_b32 s{SRD_OUT+3}, 0x20000")
    a("s_mov_b64 exec, 0xf")
    a(f"buffer_store_dwordx2 v[{F+8}:{F+9}], v{vT+4}, s[{SRD_OUT}:{SRD_OUT+3}], s{sT0} offen")
    a("s_cmp_lg_u32 s2, 0")
    a("s_cbranch_scc1 L_fin2")
    a("s_mov_b64 exec, 1")
    a(f"v_mov_b32 v{vT+5}, 0")
    a(f"v_mov_b32 v{vT+6}, s{sTAG}")
    a(f"global_store_dword v{vT+5}, v{vT+6}, s[40:41] sc1")
    a.label("L_fin2")
    a("s_mov_b64 exec, -1")
    a.label("L_fin")
    if cfg.stamps:
        stamp(11)
        a(f"s_getreg_b32 s{sT0}, hwreg(HW_REG_HW_ID)")
        a(f"s_getreg_b32 s{sT1}, hwreg(HW_REG_XCC_ID)")
        a(f"v_writelane_b32 v255, s{sT0}, 12")
        a(f"v_writelane_b32 v255, s{sT1}, 13")
        a(f"s_lshl_b32 s{sT0}, s2, 3")
        a(f"s_add_u32 s{sT0}, s{sT0}, s{sW}")
        a(f"s_lshl_b32 s{sT0}, s{sT0}, 7")
        a(f"s_add_u32 s{sT0}, s{sT0}, {WS_STAMP}")
        a(f"v_lshlrev_b32 v{vT}, 2, v{vLane}")
        a(f"v_add_u32 v{vT}, s{sT0}, v{vT}")
        a("s_mov_b32 exec_lo, -1")
        a("s_mov_b32 exec_hi, 0")
        a(f"global_store_dword v{vT}, v255, s[40:41]")
        a(f"v_add_u32 v{vT}, {1<<20}, v{vT}")
        a(f"global_store_dword v{vT}, v254, s[40:41]")
    a.label("L_end")
    a("s_endpgm")
    k = kernel_text(NAME + "_kernel", a.text(), 256, 102)
    open(path, "w").write(file_text([(NAME + "_kernel", 256, 512, LDS_BYTES)], [k]))

if __name__ == "__main__":
    cfg = Cfg()
    if "--stamps" in sys.argv: cfg.stamps = True
    if "--inter2" in sys.argv: cfg.pat = "inter2"
    if "--iwTj" in sys.argv: cfg.pat = "iwTj"
    if "--kp2" in sys.argv: cfg.kpart1 = 2
    if "--nofast" in sys.argv: cfg.fastpath = False
    if "--contig" in sys.argv: cfg.pat = "contig"
    if "--noprio" in sys.argv: cfg.prio = False
    if "--st0plain" in sys.argv: cfg.st0 = ""
    if "--nodbg0" in sys.argv: cfg.dbg0 = False
    for x in sys.argv:
        if x.startswith("--thr="): cfg.thr = int(x[6:])
    if "--warm" in sys.argv: cfg.warm = True
    for x in sys.argv:
        if x.startswith("--sleep2="): cfg.sleep2 = int(x[9:])
    for x in sys.argv:
        if x.startswith("--delay2="): cfg.delay2 = int(x[9:])
    for x in sys.argv:
        if x.startswith("--ld2="): cfg.ld2 = x[6:].replace("_", " ")
        if x.startswith("--st2="): cfg.st2 = x[6:].replace("_", " ")
    for x in sys.argv:
        if x.startswith("--abl="): cfg.abl = x[6:]
    for x in sys.argv:
        if x.startswith("--unthr="): cfg.unthr = int(x[8:])
    if "--nt" in sys.argv: cfg.fq = cfg.fk = cfg.fv = cfg.fo = "nt"
    gen(sys.argv[1], cfg)
```

```python
import sys
from asmgen import *

class Cfg:
    stamps = False
    fq = ""; fk = ""; fv = ""; fo = ""
    spin_max = 400000
    kpart1 = 1
    sleep0 = 1
    sleep1 = 0
    sleep2 = 0
    pat = "iwTj"
    fastpath = True
    pipe2 = True
    prio = True
    dbg0 = False
    thr = 3
    unthr = 3
    woearly = False
    wopos = 16
    wothr = True
    kfirst = False
    fb_rounds = 16
    abl = ''
    ld2 = 'sc1'
    st2 = 'sc1'
    delay2 = 0
    dbgm = False
    warm = False
    qw = 7
    st0 = 'sc1'

sW = 3; sH = 4; sJ = 5
sT0, sT1, sT2, sT3 = 6, 7, 8, 9
sTAG = 10; sSPIN = 11; sRB = 12; sBRT = 13
sMA = 14; sLA = 15
sMB = 42; sLB = 43
SRD_X = 44; SRD_WQ = 48; SRD_KA = 52; SRD_VA = 56; SRD_KB = 60; SRD_VB = 64
SRD_WO = 44
SRD_R = 48
SRD_OUT = 68
sOFF = 72
sMASK = 76
sPERM = 84
sSAME = 85
sP0 = 87
sP1 = 88
sP2 = 89
sXCC = 86
sSTAMP = 96

vLane = 0
vLin = 1; vKoff = 2; vWq = 3; vWo = 4
vMask = 5
vT = 9
vS = 10; vN = 11
K = 16; V = 96; Q = 176; C = 208; X = 228

LDS_QPART = 0
LDS_QHL = 4096; QHL_STRIDE = 288
LDS_ML = 5248
LDS_OPART = 5632
LDS_OHL = 13824
LDS_CNT = 14336
LDS_BYTES = 16384
WS_R0 = 4096
WS_R0S = 0x44000
WS_R1 = 0x90000
WS_R2 = 0x120000
R2ROW = 2560
WS_REC_BYTES = WS_R2 + 2*128*R2ROW
WS_STAMP = 4 << 20

def gen(path, cfg):
    a = Asm()
    def stamp(idx):
        if cfg.stamps:
            a(f"s_memrealtime s[{sSTAMP}:{sSTAMP+1}]")
            a("s_waitcnt lgkmcnt(0)")
            a(f"v_writelane_b32 v255, s{sSTAMP}, {idx}")
    def soff(T):
        return "0" if T == 0 else f"s{sOFF+T-1}"
    def ands(dst, src, bc):
        for k in range(4):
            a(f"v_and_b32_dpp v{dst+k}, v{src}, v{vMask+k} row_newbcast:{bc} row_mask:0xf bank_mask:0xf")
    def kvloads(reg, srdA, srdB, voff, T0, T1, fl):
        for T in range(T0, T1):
            for i in range(4):
                r = reg + 16*T + 4*i
                if T < 4:
                    a(f"buffer_load_dwordx4 v[{r}:{r+3}], v{voff}, s[{srdA}:{srdA+3}], {soff(T)} offen offset:{1024*i} {fl}")
                else:
                    a(f"buffer_load_dwordx4 v[{r}:{r+3}], v{voff}, s[{srdB}:{srdB+3}], 0 offen offset:{1024*i} {fl}")

    a("s_cmp_ge_u32 s2, 256")
    a("s_cbranch_scc1 L_end")
    if cfg.stamps:
        a(f"s_memrealtime s[{sSTAMP+2}:{sSTAMP+3}]")
    a("s_load_dwordx16 s[16:31], s[0:1], 0")
    a("s_load_dwordx4 s[32:35], s[0:1], 64")
    a("s_load_dwordx4 s[36:39], s[0:1], 80")
    a("s_load_dwordx2 s[40:41], s[0:1], 96")
    a(f"v_lshrrev_b32 v{vT}, 6, v0")
    a(f"v_and_b32 v{vLane}, 63, v0")
    a(f"v_readfirstlane_b32 s{sW}, v{vT}")
    a(f"s_and_b32 s{sH}, s2, 7")
    a(f"s_lshr_b32 s{sJ}, s2, 3")
    a(f"s_and_b32 s{sT0}, s{sJ}, 24")
    a(f"s_add_u32 s{sH}, s{sH}, s{sT0}")
    a(f"s_and_b32 s{sJ}, s{sJ}, 7")
    a(f"v_lshrrev_b32 v{vS}, 4, v{vLane}")
    a(f"v_and_b32 v{vN}, 15, v{vLane}")
    a(f"v_lshlrev_b32 v{vT+3}, 4, v{vN}")
    a(f"v_lshl_add_u32 v{vWq}, v{vS}, 13, v{vT+3}")
    a(f"v_lshlrev_b32 v{vT+4}, 3, v{vN}")
    a(f"v_lshl_add_u32 v{vT+4}, v{vS}, 1, v{vT+4}")
    a(f"s_and_b32 s{sRB}, s{sJ}, 3")
    a(f"s_lshr_b32 s{sBRT}, s{sJ}, 2")
    a(f"s_mul_i32 s{sT0}, s{sRB}, 160")
    a(f"s_mul_i32 s{sT1}, s{sW}, 20")
    a(f"s_add_u32 s{sT0}, s{sT0}, s{sT1}")
    a(f"s_lshl_b32 s{sT1}, s{sT0}, 13")
    a(f"s_lshl_b32 s{sT2}, s{sH}, 8")
    a(f"s_add_u32 s{sT1}, s{sT1}, s{sT2}")
    a(f"s_lshl_b32 s{sT2}, s{sT0}, 1")
    a(f"s_cmp_eq_u32 s{sBRT}, 1")
    a("s_waitcnt lgkmcnt(0)")
    if cfg.stamps:
        a("v_mov_b32 v255, 0")
        a(f"v_writelane_b32 v255, s{sSTAMP+2}, 0")
    a("s_cselect_b64 s[16:17], s[26:27], s[16:17]")
    a("s_cselect_b64 s[22:23], s[32:33], s[22:23]")
    a("s_cselect_b64 s[24:25], s[34:35], s[24:25]")
    a(f"s_add_u32 s{SRD_WQ}, s22, s{sT1}")
    a(f"s_addc_u32 s{SRD_WQ+1}, s23, 0")
    a(f"s_mov_b32 s{SRD_WQ+2}, {19*8192 + 256}")
    a(f"s_mov_b32 s{SRD_WQ+3}, 0x20000")
    a(f"s_add_u32 s{SRD_X}, s16, s{sT2}")
    a(f"s_addc_u32 s{SRD_X+1}, s17, 0")
    a(f"s_sub_u32 s{SRD_X+2}, 1280, s{sT2}")
    a(f"s_mov_b32 s{SRD_X+3}, 0x20000")
    XR0 = X
    a(f"buffer_load_ushort v{XR0}, v{vT+4}, s[{SRD_X}:{SRD_X+3}], 0 offen")
    for t in range(1, 4):
        a(f"s_mov_b32 s{sOFF+t-1}, { {'contig': 4096, 'inter2': 262144, 'iwTj': 32768}[cfg.pat]*t}")
    WQ = Q
    for t in range(5):
        so = "0"
        if t > 0:
            a(f"s_mov_b32 s{sT0}, {32768*t}")
            so = f"s{sT0}"
        a(f"buffer_load_dwordx4 v[{WQ+4*t}:{WQ+4*t+3}], v{vWq}, s[{SRD_WQ}:{SRD_WQ+3}], {so} offen {cfg.fq}")
    a(f"s_getreg_b32 s{sXCC}, hwreg(HW_REG_XCC_ID)")
    a(f"s_cmp_lg_u32 s{sW}, 0")
    a("s_cbranch_scc1 L_noinit")
    for k in range(4):
        a(f"v_mov_b32 v{X+4+k}, 0")
    a(f"v_mul_u32_u24 v{vT+5}, {QHL_STRIDE}, v{vLane}")
    a(f"v_mov_b32 v{vT+6}, 0")
    a("s_mov_b64 exec, 0xf")
    a(f"ds_write_b128 v{vT+5}, v[{X+4}:{X+7}] offset:{LDS_QHL+256}")
    a(f"ds_write_b128 v{vT+6}, v[{X+4}:{X+7}] offset:{LDS_CNT}")
    a(f"ds_write_b128 v{vT+6}, v[{X+4}:{X+7}] offset:{LDS_CNT+16}")
    a("s_mov_b64 exec, -1")
    a.label("L_noinit")
    a(f"s_lshl_b32 s{sT0}, s{sH}, 20")
    if cfg.pat == "contig":
        a(f"s_lshl_b32 s{sT2}, s{sJ}, 3")
        a(f"s_add_u32 s{sT2}, s{sT2}, s{sW}")
        a(f"s_lshl_b32 s{sT1}, s{sT2}, 14")
        tstride = 4096
    elif cfg.pat == "inter2":
        a(f"s_lshl_b32 s{sT2}, s{sW}, 3")
        a(f"s_add_u32 s{sT2}, s{sT2}, s{sJ}")
        a(f"s_lshl_b32 s{sT1}, s{sT2}, 12")
        tstride = 262144
    else:
        a(f"s_lshl_b32 s{sT1}, s{sJ}, 17")
        a(f"s_lshl_b32 s{sT2}, s{sW}, 12")
        a(f"s_add_u32 s{sT1}, s{sT1}, s{sT2}")
        a(f"s_lshl_b32 s{sT2}, s{sW}, 3")
        a(f"s_add_u32 s{sT2}, s{sT2}, s{sJ}")
        tstride = 32768
    a(f"s_add_u32 s{sT1}, s{sT1}, s{sT0}")
    a(f"s_lshl_b32 s{sT2}, s{sT2}, 12")
    a(f"s_add_u32 s{sT0}, s{sT0}, s{sT2}")
    a(f"s_add_u32 s{sT0}, s{sT0}, 786432")
    asz = 3*tstride + 4096
    for srd, p, off, sz in ((SRD_KA, 18, sT1, asz), (SRD_VA, 20, sT1, asz), (SRD_KB, 28, sT0, 4096), (SRD_VB, 30, sT0, 4096)):
        a(f"s_add_u32 s{srd}, s{p}, s{off}")
        a(f"s_addc_u32 s{srd+1}, s{p+1}, 0")
        a(f"s_mov_b32 s{srd+2}, {sz}")
        a(f"s_mov_b32 s{srd+3}, 0x20000")
    a(f"v_lshrrev_b32 v{vT+5}, 2, v{vN}")
    a(f"v_and_b32 v{vT+6}, 3, v{vN}")
    a(f"v_lshlrev_b32 v{vKoff}, 8, v{vT+5}")
    a(f"v_lshl_add_u32 v{vKoff}, v{vS}, 6, v{vKoff}")
    a(f"v_lshl_add_u32 v{vKoff}, v{vT+6}, 4, v{vKoff}")
    KP = cfg.kpart1
    a("s_waitcnt lgkmcnt(0)")
    a("s_barrier")
    kvloads(K, SRD_KA, SRD_KB, vKoff, 0, KP, cfg.fk)
    a(f"s_load_dword s{sTAG}, s[40:41], 0")
    stamp(1)
    a(f"v_lshlrev_b32 v{vLin}, 4, v{vLane}")
    a(f"v_mul_u32_u24 v{vWo}, 1280, v{vS}")
    a(f"v_add_u32 v{vWo}, v{vWo}, v{vT+3}")
    vQA = X + 23
    a(f"v_lshlrev_b32 v{vT+3}, 6, v{vS}")
    a(f"v_lshl_add_u32 v{vT+3}, v{vT+6}, 4, v{vT+3}")
    a(f"v_mov_b32 v{vT+4}, 256")
    for i in range(4):
        pat = 0x000f000f << (4*i)
        a(f"s_mov_b32 s{sMASK+2*i}, 0x{pat:08x}")
        a(f"s_mov_b32 s{sMASK+2*i+1}, 0x{pat:08x}")
    for i in range(4):
        a(f"v_cndmask_b32_e64 v{vQA+i}, v{vT+4}, v{vT+3}, s[{sMASK+2*i}:{sMASK+2*i+1}]")
    a(f"v_and_b32 v{vT+5}, 1, v{vLane}")
    a(f"v_lshlrev_b32 v{vT+5}, 4, v{vT+5}")
    a(f"v_mov_b32 v{vT+6}, 0xffff")
    a(f"v_lshlrev_b32 v{vT+5}, v{vT+5}, v{vT+6}")
    for k, pat in enumerate((0x03030303, 0x0c0c0c0c, 0x30303030, 0xc0c0c0c0)):
        a(f"s_mov_b32 s{sMASK+2*k}, 0x{pat:08x}")
        a(f"s_mov_b32 s{sMASK+2*k+1}, 0x{pat:08x}")
    for k in range(4):
        a(f"v_cndmask_b32_e64 v{vMask+k}, 0, v{vT+5}, s[{sMASK+2*k}:{sMASK+2*k+1}]")
    AOP = [C, C + 4]; QC = C + 8
    a(f"s_waitcnt vmcnt({5+4*KP})")
    a(f"v_lshl_or_b32 v{XR0}, v{XR0}, 16, v{XR0}")
    a("s_nop 1")
    ands(AOP[0], XR0, 0)
    for t in range(5):
        if t + 1 < 5:
            ands(AOP[(t+1) % 2], XR0, t+1)
        else:
            a("s_nop 1")
        a(f"s_waitcnt vmcnt({4*KP + 4 - t})")
        c = "0" if t == 0 else f"v[{QC}:{QC+3}]"
        a(f"v_mfma_f32_16x16x32_bf16 v[{QC}:{QC+3}], v[{AOP[t%2]}:{AOP[t%2]+3}], v[{WQ+4*t}:{WQ+4*t+3}], {c}")
    vPA = X + 22
    a(f"v_lshlrev_b32 v{vPA}, 5, v{vN}")
    a(f"v_lshl_add_u32 v{vPA}, v{vS}, 4, v{vPA}")
    a(f"s_lshl_b32 s{sT0}, s{sW}, 9")
    a(f"v_add_u32 v{vPA}, s{sT0}, v{vPA}")
    a(f"s_mov_b32 s{SRD_R}, s40")
    a(f"s_mov_b32 s{SRD_R+1}, s41")
    a(f"s_mov_b32 s{SRD_R+2}, {WS_REC_BYTES}")
    a(f"s_mov_b32 s{SRD_R+3}, 0x20000")
    a(f"v_mov_b32 v{vT+5}, 0")
    a(f"v_mov_b32 v{vT+6}, 1")
    a("s_mov_b32 exec_hi, 0")
    a("s_nop 0")
    a(f"ds_write_b128 v{vPA}, v[{QC}:{QC+3}] offset:{LDS_QPART}")
    a("s_mov_b64 exec, 1")
    a(f"ds_add_u32 v{vT+5}, v{vT+6} offset:{LDS_CNT}")
    a("s_mov_b64 exec, -1")
    a("s_waitcnt lgkmcnt(0)")
    a(f"s_add_u32 s{sTAG}, s{sTAG}, 1")
    stamp(2)
    a(f"s_cmp_lg_u32 s{sW}, {cfg.qw}")
    a("s_cbranch_scc1 L_bulk")
    if cfg.prio: a("s_setprio 3")
    if cfg.kfirst:
        kvloads(K, SRD_KA, SRD_KB, vKoff, KP, 5, cfg.fk)
    a.label("L_cntq")
    a(f"ds_read_b32 v{vT+6}, v{vT+5} offset:{LDS_CNT}")
    a("s_waitcnt lgkmcnt(0)")
    a(f"v_cmp_ne_u32 vcc, 8, v{vT+6}")
    a("s_cbranch_vccz L_cntq_done")
    a("s_sleep 1")
    a("s_branch L_cntq")
    a.label("L_cntq_done")
    QS = C
    a(f"v_lshlrev_b32 v{vT+3}, 3, v{vLane}")
    for w in range(8):
        a(f"ds_read_b64 v[{QS+2*w}:{QS+2*w+1}], v{vT+3} offset:{LDS_QPART+512*w}")
    a("s_waitcnt lgkmcnt(0)")
    for st in (8, 4, 2):
        for k in range(0, st, 2):
            a(f"v_add_f32 v{QS+k}, v{QS+k}, v{QS+st+k}")
            a(f"v_add_f32 v{QS+k+1}, v{QS+k+1}, v{QS+st+k+1}")
    G = X + 4
    a(f"v_mov_b32 v{G}, v{QS}")
    a(f"v_mov_b32 v{G+1}, v{QS+1}")
    a(f"v_mov_b32 v{G+2}, s{sXCC}")
    a(f"v_mov_b32 v{G+3}, s{sTAG}")
    a(f"s_lshl_b32 s{sT0}, s{sH}, 13")
    a(f"s_add_u32 s{sT0}, s{sT0}, {WS_R0}")
    a(f"s_lshl_b32 s{sT1}, s{sJ}, 10")
    a(f"s_add_u32 s{sT1}, s{sT1}, s{sT0}")
    stamp(16)
    if 'x' in cfg.abl:
        a("s_branch L_abl_flag")
    a(f"buffer_store_dwordx4 v[{G}:{G+3}], v{vLin}, s[{SRD_R}:{SRD_R+3}], s{sT1} offen")
    a(f"s_add_u32 s{sP0}, s{sT1}, {WS_R0S - WS_R0}")
    a(f"s_mov_b32 s{sP1}, 0")
    F = Q
    a(f"s_xor_b32 s{sT3}, s{sTAG}, 1")
    for k in range(8):
        a(f"v_mov_b32 v{F+4*k+3}, s{sT3}")
    a(f"s_mov_b32 s{sSPIN}, 0")
    a.label("L_poll0")
    a(f"s_mov_b32 s{sT3}, s{sT0}")
    a(f"s_cmp_lt_u32 s{sSPIN}, {cfg.fb_rounds}")
    a("s_cbranch_scc1 L_p0go")
    a(f"s_cmp_eq_u32 s{sP1}, 1")
    a("s_cbranch_scc1 L_p0alt")
    a(f"buffer_store_dwordx4 v[{G}:{G+3}], v{vLin}, s[{SRD_R}:{SRD_R+3}], s{sP0} offen sc1")
    a(f"s_mov_b32 s{sP1}, 1")
    a.label("L_p0alt")
    a(f"s_bitcmp1_b32 s{sSPIN}, 0")
    a("s_cbranch_scc0 L_p0go")
    a(f"s_add_u32 s{sT3}, s{sT3}, {WS_R0S - WS_R0}")
    a.label("L_p0go")
    for k in range(8):
        a(f"v_cmp_ne_u32 vcc, s{sTAG}, v{F+4*k+3}")
        a("s_mov_b64 exec, vcc")
        a(f"s_cbranch_execz L_p0skip{k}")
        a(f"buffer_load_dwordx4 v[{F+4*k}:{F+4*k+3}], v{vLin}, s[{SRD_R}:{SRD_R+3}], s{sT3} offen sc1")
        a.label(f"L_p0skip{k}")
        a("s_mov_b64 exec, -1")
        if k < 7:
            a(f"s_add_u32 s{sT3}, s{sT3}, 1024")
    a("s_waitcnt vmcnt(0)")
    a(f"v_xor_b32 v{vT+6}, s{sTAG}, v{F+3}")
    for k in range(1, 8):
        a(f"v_xor_b32 v{vT+4}, s{sTAG}, v{F+4*k+3}")
        a(f"v_or_b32 v{vT+6}, v{vT+6}, v{vT+4}")
    a(f"v_cmp_ne_u32 vcc, 0, v{vT+6}")
    a("s_cbranch_vccz L_poll0_done")
    a(f"s_add_u32 s{sSPIN}, s{sSPIN}, 1")
    a(f"s_cmp_lt_u32 s{sSPIN}, {cfg.spin_max}")
    a("s_cbranch_scc1 L_poll0")
    a.label("L_poll0_done")
    stamp(18)
    if cfg.stamps:
        a(f"v_writelane_b32 v255, s{sSPIN}, 14")
    a(f"v_xor_b32 v{vT+6}, s{sXCC}, v{F+2}")
    for k in range(1, 8):
        a(f"v_xor_b32 v{vT+4}, s{sXCC}, v{F+4*k+2}")
        a(f"v_or_b32 v{vT+6}, v{vT+6}, v{vT+4}")
    a(f"v_cmp_ne_u32 vcc, 0, v{vT+6}")
    a(f"s_cmp_eq_u64 vcc, 0")
    a(f"s_cselect_b32 s{sSAME}, 1, 0")
    a(f"s_or_b32 s{sT3}, s{sSAME}, s{sP1}")
    a(f"s_cmp_eq_u32 s{sT3}, 0")
    a("s_cbranch_scc0 L_p0noslow")
    a(f"buffer_store_dwordx4 v[{G}:{G+3}], v{vLin}, s[{SRD_R}:{SRD_R+3}], s{sP0} offen sc1")
    a.label("L_p0noslow")
    a(f"s_mov_b32 s{sT0}, 0x3e0293ee")
    a(f"s_mov_b32 s{sPERM}, 0x07060302")
    a(f"v_lshlrev_b32 v{vT+3}, 2, v{vLane}")
    for br in range(2):
        f = F + 16*br
        for e in (0, 1):
            a(f"v_add_f32 v{f+e}, v{f+e}, v{f+4+e}")
            a(f"v_add_f32 v{f+8+e}, v{f+8+e}, v{f+12+e}")
        for e in (0, 1):
            a(f"v_add_f32 v{f+e}, v{f+e}, v{f+8+e}")
        for e in (0, 1):
            a(f"v_mul_f32 v{f+e}, s{sT0}, v{f+e}")
        a(f"v_perm_b32 v{f+4}, v{f+1}, v{f}, s{sPERM}")
        a(f"v_and_b32 v{f+5}, 0xffff0000, v{f}")
        a(f"v_and_b32 v{f+6}, 0xffff0000, v{f+1}")
        a(f"v_sub_f32 v{f+5}, v{f}, v{f+5}")
        a(f"v_sub_f32 v{f+6}, v{f+1}, v{f+6}")
        a(f"v_cvt_pk_bf16_f32 v{f+5}, v{f+5}, v{f+6}")
        a(f"ds_write_b32 v{vT+3}, v{f+4} offset:{LDS_QHL + (2*br)*QHL_STRIDE}")
        a(f"ds_write_b32 v{vT+3}, v{f+5} offset:{LDS_QHL + (2*br+1)*QHL_STRIDE}")
    a.label("L_abl_flag")
    a(f"v_mov_b32 v{vT+5}, 1")
    a(f"v_mov_b32 v{vT+6}, s{sSAME}")
    a(f"v_mov_b32 v{vT+4}, 0")
    a("s_mov_b64 exec, 1")
    a(f"ds_write_b64 v{vT+4}, v[{vT+5}:{vT+6}] offset:{LDS_CNT+8}")
    a("s_mov_b64 exec, -1")
    if cfg.kfirst:
        if cfg.prio: a("s_setprio 0")
        a("s_branch L_afterK")
    a.label("L_bulk")
    if cfg.prio: a("s_setprio 0")
    def thr():
        a(f"s_waitcnt vmcnt({cfg.thr})")
    a(f"s_cmp_eq_u32 s{sW}, {cfg.qw}")
    for T in range(KP, 5):
        a(f"s_cbranch_scc1 L_nothr{T}")
        thr()
        a.label(f"L_nothr{T}")
        kvloads(K, SRD_KA, SRD_KB, vKoff, T, T + 1, cfg.fk)
    a.label("L_afterK")
    stamp(3)
    thr()
    kvloads(V, SRD_VA, SRD_VB, vLin, 0, 1, cfg.fv)
    a(f"v_mov_b32 v{vT+4}, 0")
    a.label("L_flagq")
    a(f"ds_read_b64 v[{vT+5}:{vT+6}], v{vT+4} offset:{LDS_CNT+8}")
    a("s_waitcnt lgkmcnt(0)")
    a(f"v_cmp_ne_u32 vcc, 1, v{vT+5}")
    a("s_cbranch_vccz L_flagq_done")
    a("s_sleep 2")
    a("s_branch L_flagq")
    a.label("L_flagq_done")
    a(f"v_readfirstlane_b32 s{sSAME}, v{vT+6}")
    stamp(4)
    def consts(br):
        for i in range(4):
            a(f"ds_read_b128 v[{Q+8*i}:{Q+8*i+3}], v{vQA+i} offset:{LDS_QHL + (2*br)*QHL_STRIDE}")
            a(f"ds_read_b128 v[{Q+8*i+4}:{Q+8*i+7}], v{vQA+i} offset:{LDS_QHL + (2*br+1)*QHL_STRIDE}")
    def qk(T):
        c = C + 4*T
        for i in range(4):
            r = K + 16*T + 4*i
            cin = "0" if i == 0 else f"v[{c}:{c+3}]"
            if 'q' in cfg.abl: continue
            a(f"v_mfma_f32_16x16x32_bf16 v[{c}:{c+3}], v[{r}:{r+3}], v[{Q+8*i}:{Q+8*i+3}], {cin}")
            a(f"v_mfma_f32_16x16x32_bf16 v[{c}:{c+3}], v[{r}:{r+3}], v[{Q+8*i+4}:{Q+8*i+7}], v[{c}:{c+3}]")
    a(f"s_lshl_b32 s{sT1}, s{sH}, 7")
    a(f"s_lshl_b32 s{sT2}, s{sRB}, 5")
    a(f"s_add_u32 s{sT1}, s{sT1}, s{sT2}")
    a(f"s_mul_i32 s{sT1}, s{sT1}, 1280")
    a(f"s_lshl_b32 s{sT0}, s{sW}, 8")
    a(f"s_add_u32 s{sT0}, s{sT0}, s{sT1}")
    a(f"s_add_u32 s{SRD_WO}, s24, s{sT0}")
    a(f"s_addc_u32 s{SRD_WO+1}, s25, 0")
    a(f"s_cmp_lt_u32 s{sW}, 5")
    a(f"s_cselect_b32 s{SRD_WO+2}, {31*1280 + 256}, 0")
    a(f"s_mov_b32 s{SRD_WO+3}, 0x20000")
    WO = K
    def woloads(t0, t1):
        for t in range(t0, t1):
            r = WO + 4*t
            so = "0"
            if t > 0:
                a(f"s_movk_i32 s{sT1}, {5120*t}" if 5120*t < 32768 else f"s_mov_b32 s{sT1}, {5120*t}")
                so = f"s{sT1}"
            a(f"buffer_load_dwordx4 v[{r}:{r+3}], v{vWo}, s[{SRD_WO}:{SRD_WO+3}], {so} offen {cfg.fo}")
    consts(0)
    a("s_waitcnt vmcnt(8) lgkmcnt(0)")
    for T in range(4):
        qk(T)
        if T == 3:
            consts(1)
        if T + 1 < cfg.unthr: thr()
        kvloads(V, SRD_VA, SRD_VB, vLin, T + 1, T + 2, cfg.fv)
    if cfg.woearly:
        woloads(0, 8)
        stamp(5)
        a(f"s_waitcnt vmcnt(24) lgkmcnt(0)")
    else:
        a(f"s_waitcnt vmcnt(16) lgkmcnt(0)")
    qk(4)
    a(f"s_mov_b32 s{sMASK}, 0xaaaaaaaa"); a(f"s_mov_b32 s{sMASK+1}, 0xaaaaaaaa")
    a(f"s_mov_b32 s{sMASK+2}, 0xcccccccc"); a(f"s_mov_b32 s{sMASK+3}, 0xcccccccc")
    T0 = X; T1 = X + 5; SC = X + 10; PK = X + 15; MX = X + 20
    for T in range(5):
        c = C + 4*T
        a(f"v_cndmask_b32_e64 v{T0+T}, v{c}, v{c+1}, s[{sMASK}:{sMASK+1}]")
        a(f"v_cndmask_b32_e64 v{T1+T}, v{c+2}, v{c+3}, s[{sMASK}:{sMASK+1}]")
    for T in range(5):
        a(f"v_cndmask_b32_e64 v{SC+T}, v{T0+T}, v{T1+T}, s[{sMASK+2}:{sMASK+3}]")
    for T in range(5):
        a(f"v_add_f32_dpp v{SC+T}, v{SC+T}, v{SC+T} quad_perm:[1,0,3,2] row_mask:0xf bank_mask:0xf")
    for T in range(5):
        a(f"v_add_f32_dpp v{SC+T}, v{SC+T}, v{SC+T} quad_perm:[2,3,0,1] row_mask:0xf bank_mask:0xf")
    a(f"v_max3_f32 v{MX}, v{SC}, v{SC+1}, v{SC+2}")
    a(f"v_mov_b32 v{MX+1}, v{SC+4}")
    a(f"v_max_f32 v{MX}, v{MX}, v{SC+3}")
    def wave_reduce2(op, r0, r1, s0, s1):
        for mod in ("row_ror:4 row_mask:0xf", "row_ror:8 row_mask:0xf", "row_bcast:15 row_mask:0xa", "row_bcast:31 row_mask:0xc"):
            a("s_nop 0")
            a(f"{op}_dpp v{r1}, v{r1}, v{r1} {mod} bank_mask:0xf")
            a(f"{op}_dpp v{r0}, v{r0}, v{r0} {mod} bank_mask:0xf")
        a(f"v_readlane_b32 s{s1}, v{r1}, 63")
        a(f"v_readlane_b32 s{s0}, v{r0}, 63")
        a("s_nop 1")
    a("s_nop 0")
    wave_reduce2("v_max_f32", MX, MX + 1, sMA, sMB)
    for T in range(5):
        a(f"v_subrev_f32 v{SC+T}, s{sMA if T < 4 else sMB}, v{SC+T}")
    for T in range(5):
        a(f"v_exp_f32 v{SC+T}, v{SC+T}")
    a("s_nop 0")
    for T in range(5):
        a(f"v_cvt_pk_bf16_f32 v{PK+T}, v{SC+T}, v{SC+T}")
    for T in range(5):
        a(f"v_and_b32 v{SC+T}, 0xffff0000, v{PK+T}")
    a(f"v_add_f32 v{SC}, v{SC}, v{SC+1}")
    a(f"v_add_f32 v{SC+2}, v{SC+2}, v{SC+3}")
    a(f"v_add_f32 v{SC}, v{SC}, v{SC+2}")
    a("s_nop 0")
    wave_reduce2("v_add_f32", SC, SC + 4, sLA, sLB)
    a(f"s_lshl_b32 s{sT0}, s{sW}, 3")
    a(f"v_mov_b32 v{vT+6}, s{sT0}")
    a(f"v_mov_b32 v{X}, s{sMA}")
    a(f"v_mov_b32 v{X+1}, s{sLA}")
    a(f"v_mov_b32 v{X+2}, s{sMB}")
    a(f"v_mov_b32 v{X+3}, s{sLB}")
    a(f"v_mov_b32 v{vT+4}, 0")
    a(f"v_mov_b32 v{vT+5}, 1")
    a("s_mov_b64 exec, 1")
    a(f"ds_write_b64 v{vT+6}, v[{X}:{X+1}] offset:{LDS_ML}")
    a(f"ds_write_b64 v{vT+6}, v[{X+2}:{X+3}] offset:{LDS_ML+64}")
    a(f"ds_add_u32 v{vT+4}, v{vT+5} offset:{LDS_CNT+4}")
    a("s_mov_b64 exec, -1")
    AO = [Q, Q + 4]; OCA = Q + 8; OCB = Q + 12
    sWG = 52
    LSE = X + 8
    def early_weights():
        a(f"s_cmp_lt_u32 s{sW}, 5")
        a("s_cbranch_scc1 L_noew")
        a(f"s_cmp_eq_u32 s{sW}, 7")
        a("s_cbranch_scc1 L_noew")
        a(f"v_mov_b32 v{vT+4}, 0")
        a.label("L_cntml")
        a(f"ds_read_b32 v{vT+5}, v{vT+4} offset:{LDS_CNT+4}")
        a("s_waitcnt lgkmcnt(0)")
        a(f"v_cmp_ne_u32 vcc, 8, v{vT+5}")
        a("s_cbranch_vccz L_cntml_done")
        a("s_sleep 1")
        a("s_branch L_cntml")
        a.label("L_cntml_done")
        a(f"s_sub_u32 s{sT2}, s{sW}, 5")
        a(f"s_lshl_b32 s{sT0}, s{sT2}, 6")
        a(f"v_and_b32 v{vT+4}, 7, v{vLane}")
        a(f"v_lshlrev_b32 v{vT+4}, 3, v{vT+4}")
        a(f"v_add_u32 v{vT+4}, s{sT0}, v{vT+4}")
        EM = X + 4; EL = X + 5; ET = X + 6; EU = X + 7
        a(f"ds_read_b64 v[{EM}:{EL}], v{vT+4} offset:{LDS_ML}")
        a("s_waitcnt lgkmcnt(0)")
        a(f"v_mov_b32 v{ET}, v{EM}")
        for mod in ("quad_perm:[1,0,3,2]", "quad_perm:[2,3,0,1]", "row_half_mirror"):
            a("s_nop 1")
            a(f"v_max_f32_dpp v{ET}, v{ET}, v{ET} {mod} row_mask:0xf bank_mask:0xf")
        a(f"v_sub_f32 v{EM}, v{EM}, v{ET}")
        a(f"v_exp_f32 v{EM}, v{EM}")
        a("s_nop 0")
        a(f"v_mul_f32 v{EU}, v{EM}, v{EL}")
        for mod in ("quad_perm:[1,0,3,2]", "quad_perm:[2,3,0,1]", "row_half_mirror"):
            a("s_nop 1")
            a(f"v_add_f32_dpp v{EU}, v{EU}, v{EU} {mod} row_mask:0xf bank_mask:0xf")
        a(f"v_rcp_f32 v{EL}, v{EU}")
        a(f"v_log_f32 v{LSE}, v{EU}")
        a("s_nop 0")
        a(f"v_mul_f32 v{EM}, v{EM}, v{EL}")
        a(f"v_add_f32 v{LSE}, v{LSE}, v{ET}")
        a("s_nop 0")
        for w in range(8):
            a(f"v_readlane_b32 s{sWG+w}, v{EM}, {w}")
        a.label("L_noew")
    steps = [(T, t) for T in range(5) for t in range(4)]
    ands(AO[0], PK + 0, 0)
    for idx, (T, t) in enumerate(steps):
        if idx + 1 < len(steps):
            T2, t2 = steps[idx+1]
            ands(AO[(idx+1) % 2], PK + T2, 4*t2)
        else:
            a("s_nop 1")
        if idx == 0:
            if cfg.wopos == 0 and not cfg.woearly:
                woloads(0, 8)
                stamp(5)
            a(f"s_waitcnt vmcnt({12 if (cfg.woearly or cfg.wopos == 0) else 4})")
        if idx == 16:
            if not cfg.woearly and cfg.wopos == 16 and not cfg.wothr:
                woloads(0, 8)
                stamp(5)
            early_weights()
            if not cfg.woearly and cfg.wopos == 16 and cfg.wothr:
                thr()
                woloads(0, 8)
                stamp(5)
            a("s_waitcnt vmcnt(8)")
        r = V + 16*T + 4*t
        oc = OCA if T < 4 else OCB
        c = "0" if idx in (0, 16) else f"v[{oc}:{oc+3}]"
        a(f"v_mfma_f32_16x16x32_bf16 v[{oc}:{oc+3}], v[{AO[idx%2]}:{AO[idx%2]+3}], v[{r}:{r+3}], {c}")
    a("s_mov_b32 exec_hi, 0")
    a(f"ds_write_b128 v{vPA}, v[{OCA}:{OCA+3}] offset:{LDS_OPART}")
    a("s_nop 6")
    a(f"ds_write_b128 v{vPA}, v[{OCB}:{OCB+3}] offset:{LDS_OPART+4096}")
    a("s_mov_b64 exec, -1")
    a(f"s_lshl_b32 s{sT1}, s{sH}, 1")
    a(f"s_add_u32 s{sT1}, s{sT1}, s{sBRT}")
    a(f"s_lshl_b32 s{sT1}, s{sT1}, 13")
    a(f"s_lshl_b32 s{sT2}, s{sRB}, 8")
    a(f"s_add_u32 s{sT1}, s{sT1}, s{sT2}")
    a(f"s_add_u32 s{sP1}, s{sT1}, {WS_R1}")
    a(f"s_lshl_b32 s{sT0}, s{sBRT}, 7")
    a(f"s_lshl_b32 s{sT1}, s{sH}, 2")
    a(f"s_add_u32 s{sT0}, s{sT0}, s{sT1}")
    a(f"s_add_u32 s{sT0}, s{sT0}, s{sRB}")
    a(f"s_mul_i32 s{sT0}, s{sT0}, {R2ROW}")
    a(f"s_lshl_b32 s{sT1}, s{sW}, 9")
    a(f"s_add_u32 s{sT0}, s{sT0}, s{sT1}")
    a(f"s_add_u32 s{sP2}, s{sT0}, {WS_R2}")
    a(f"s_sub_u32 s{sT2}, s{sW}, 5")
    a(f"s_lshl_b32 s{sT0}, s{sH}, 1")
    a(f"s_add_u32 s{sT0}, s{sT0}, s{sT2}")
    a(f"s_lshl_b32 s{sT0}, s{sT0}, 3")
    a(f"s_add_u32 s{sT0}, s{sT0}, s{sJ}")
    a(f"s_lshl_b32 s{sT0}, s{sT0}, 10")
    a(f"s_add_u32 s{sP0}, s{sT0}, {WS_R1}")
    a(f"s_lshl_b32 s{sT0}, s{sT2}, 12")
    a(f"v_lshlrev_b32 v{vT+4}, 3, v{vLane}")
    a(f"v_add_u32 v{vT+4}, s{sT0}, v{vT+4}")
    a("s_waitcnt lgkmcnt(0)")
    a("s_barrier")
    stamp(6)
    if 'e' in cfg.abl:
        a("s_waitcnt vmcnt(0)")
        stamp(9)
        a("s_branch L_fin")
    a(f"s_cmp_lt_u32 s{sW}, 5")
    a("s_cbranch_scc1 L_proj")
    a(f"s_cmp_eq_u32 s{sW}, 7")
    a("s_cbranch_scc1 L_no_proj")
    OP = V
    for w in range(8):
        a(f"ds_read_b64 v[{OP+2*w}:{OP+2*w+1}], v{vT+4} offset:{LDS_OPART+512*w}")
    G = X + 4
    a(f"v_mov_b32 v{G+2}, v{LSE}")
    a(f"v_mov_b32 v{G+3}, s{sTAG}")
    a(f"v_mov_b32 v{vT+5}, 0")
    a(f"v_mov_b32 v{vT+6}, 1")
    for w in range(8):
        if w % 2 == 0:
            a(f"s_waitcnt lgkmcnt({6 - w})")
        if w == 0:
            a(f"v_mul_f32 v{G}, s{sWG}, v{OP}")
            a(f"v_mul_f32 v{G+1}, s{sWG}, v{OP+1}")
        else:
            a(f"v_fmac_f32 v{G}, s{sWG+w}, v{OP+2*w}")
            a(f"v_fmac_f32 v{G+1}, s{sWG+w}, v{OP+2*w+1}")
    a(f"s_cmp_eq_u32 s{sSAME}, 1")
    a("s_cbranch_scc1 L_pub1_fast")
    a(f"buffer_store_dwordx4 v[{G}:{G+3}], v{vLin}, s[{SRD_R}:{SRD_R+3}], s{sP0} offen sc1")
    a("s_branch L_pub1_done")
    a.label("L_pub1_fast")
    a(f"buffer_store_dwordx4 v[{G}:{G+3}], v{vLin}, s[{SRD_R}:{SRD_R+3}], s{sP0} offen")
    a.label("L_pub1_done")
    a("s_mov_b64 exec, 1")
    a(f"ds_add_u32 v{vT+5}, v{vT+6} offset:{LDS_CNT+16}")
    a("s_mov_b64 exec, -1")
    stamp(7)
    a("s_branch L_fin")
    a.label("L_proj")
    GR = V
    vP1 = vT + 3
    a(f"v_and_b32 v{vP1}, 7, v{vN}")
    a(f"v_lshlrev_b32 v{vP1}, 5, v{vP1}")
    a(f"v_lshrrev_b32 v{vT+4}, 1, v{vS}")
    a(f"v_lshl_add_u32 v{vP1}, v{vT+4}, 4, v{vP1}")
    TB = sMASK + 2
    a(f"s_lshr_b32 s{TB+1}, s{sTAG}, 8")
    a(f"s_lshr_b32 s{TB+2}, s{sTAG}, 16")
    a(f"s_lshr_b32 s{TB+3}, s{sTAG}, 24")
    a(f"s_mov_b32 s{sMASK}, 0xffff0000")
    a(f"s_mov_b32 s{sMASK+1}, 0xffff0000")
    a(f"v_mov_b32 v{vT+5}, 0xff")
    a(f"v_mov_b32 v{vT+4}, 0")
    a(f"s_mov_b32 s{sSPIN}, {cfg.spin_max}")
    a.label("L_cntpub")
    a(f"ds_read_b32 v{vT+6}, v{vT+4} offset:{LDS_CNT+16}")
    a("s_waitcnt lgkmcnt(0)")
    a(f"v_cmp_ne_u32 vcc, 2, v{vT+6}")
    a("s_cbranch_vccnz L_cntpub")
    a.label("L_poll1")
    a(f"s_mov_b32 s{sT3}, s{sP1}")
    for i in range(8):
        a(f"buffer_load_dwordx4 v[{GR+4*i}:{GR+4*i+3}], v{vP1}, s[{SRD_R}:{SRD_R+3}], s{sT3} offen sc1")
        if i < 7:
            a(f"s_add_u32 s{sT3}, s{sT3}, 1024")
    a("s_waitcnt vmcnt(0)")
    a(f"v_xor_b32 v{X}, s{sTAG}, v{GR+3}")
    for i in range(1, 8):
        a(f"v_xor_b32 v{X+1}, s{sTAG}, v{GR+4*i+3}")
        a(f"v_or_b32 v{X}, v{X}, v{X+1}")
    a(f"v_cmp_ne_u32 vcc, 0, v{X}")
    if 'h' in cfg.abl: a("s_branch L_poll1_done")
    a("s_cbranch_vccz L_poll1_done")
    a(f"s_sub_u32 s{sSPIN}, s{sSPIN}, 1")
    a(f"s_cmp_eq_u32 s{sSPIN}, 0")
    a("s_cbranch_scc0 L_poll1")
    a.label("L_poll1_done")
    stamp(17)
    MM = X + 2; G = X + 4
    a(f"v_max3_f32 v{MM}, v{GR+2}, v{GR+6}, v{GR+10}")
    a(f"v_max3_f32 v{MM}, v{MM}, v{GR+14}, v{GR+18}")
    a(f"v_max3_f32 v{MM}, v{MM}, v{GR+22}, v{GR+26}")
    a(f"v_max_f32 v{MM}, v{MM}, v{GR+30}")
    for i in range(8):
        a(f"v_sub_f32 v{GR+4*i+2}, v{GR+4*i+2}, v{MM}")
    for i in range(8):
        a(f"v_exp_f32 v{GR+4*i+2}, v{GR+4*i+2}")
    a("s_nop 0")
    a(f"v_mul_f32 v{G}, v{GR+2}, v{GR}")
    a(f"v_mul_f32 v{G+1}, v{GR+2}, v{GR+1}")
    a(f"v_mov_b32 v{G+2}, v{GR+2}")
    for i in range(1, 8):
        a(f"v_fmac_f32 v{G}, v{GR+4*i+2}, v{GR+4*i}")
        a(f"v_fmac_f32 v{G+1}, v{GR+4*i+2}, v{GR+4*i+1}")
        a(f"v_add_f32 v{G+2}, v{G+2}, v{GR+4*i+2}")
    a(f"v_rcp_f32 v{G+2}, v{G+2}")
    a(f"v_cndmask_b32_e64 v{G}, v{G}, v{G+1}, s[{sMASK}:{sMASK+1}]")
    a(f"v_mul_f32 v{G}, v{G}, v{G+2}")
    OPK = X + 8
    a(f"v_cvt_pk_bf16_f32 v{OPK}, v{G}, v{G}")
    a("s_nop 1")
    AO2 = [Q, Q + 4]; C0 = Q + 16
    ands(AO2[0], OPK, 0)
    for t in range(8):
        if t + 1 < 8:
            ands(AO2[(t+1) % 2], OPK, t + 1)
        else:
            a("s_nop 1")
        c = "0" if t == 0 else f"v[{C0}:{C0+3}]"
        a(f"v_mfma_f32_16x16x32_bf16 v[{C0}:{C0+3}], v[{AO2[t%2]}:{AO2[t%2]+3}], v[{WO+4*t}:{WO+4*t+3}], {c}")
    a("s_nop 7")
    PB = X + 4
    for r in range(4):
        src = sTAG if r == 0 else TB + r
        a(f"v_bfi_b32 v{PB+r}, v{vT+5}, s{src}, v{C0+r}")
    a("s_mov_b32 exec_hi, 0")
    a(f"buffer_store_dwordx4 v[{PB}:{PB+3}], v{vLin}, s[{SRD_R}:{SRD_R+3}], s{sP2} offen {cfg.st2}")
    a("s_mov_b64 exec, -1")
    stamp(10)
    a("s_cmp_ge_u32 s2, 80")
    a("s_cbranch_scc1 L_noE")
    if 'n' not in cfg.abl: a("s_barrier")
    a.label("L_noE")
    if cfg.stamps:
        a("s_waitcnt vmcnt(0)")
        stamp(19)
    a("s_branch L_fin")
    a.label("L_no_proj")
    a(f"s_cmp_lg_u32 s{sW}, 7")
    a("s_cbranch_scc1 L_fin")
    if 'n' in cfg.abl: a("s_branch L_fin")
    a("s_cmp_ge_u32 s2, 80")
    a("s_cbranch_scc1 L_fin")
    a(f"s_and_b32 s{sT0}, s2, 7")
    a(f"s_mul_i32 s{sT0}, s{sT0}, 10")
    a(f"s_lshr_b32 s{sT1}, s2, 3")
    a(f"s_add_u32 s{sT0}, s{sT0}, s{sT1}")
    a(f"s_cmp_ge_u32 s{sT0}, 40")
    a(f"s_cselect_b32 s{sBRT}, 1, 0")
    a(f"s_mul_i32 s{sT1}, s{sBRT}, 40")
    a(f"s_sub_u32 s{sRB}, s{sT0}, s{sT1}")
    a(f"s_mul_i32 s{sT2}, s{sBRT}, {128*R2ROW}")
    a(f"s_lshl_b32 s{sT3}, s{sRB}, 6")
    a(f"s_add_u32 s{sT2}, s{sT2}, s{sT3}")
    a(f"s_add_u32 s{sT2}, s{sT2}, {WS_R2}")
    a(f"v_lshrrev_b32 v{vT+3}, 2, v{vLane}")
    a(f"v_mul_u32_u24 v{vT+3}, {R2ROW}, v{vT+3}")
    a(f"v_and_b32 v{vT+4}, 3, v{vLane}")
    a(f"v_lshl_add_u32 v{vT+3}, v{vT+4}, 4, v{vT+3}")
    SA = K; SB = K + 32; F = V
    MK = 52
    for k in range(8):
        a(f"s_mov_b64 s[{MK+2*k}:{MK+2*k+1}], -1")
    a(f"s_mov_b32 s{sPERM}, 0x0c0c0400")
    if cfg.stamps: a(f"s_mov_b32 s{sSTAMP+5}, 20")
    def loopstamp():
        if cfg.stamps:
            a(f"s_memrealtime s[{sSTAMP}:{sSTAMP+1}]")
            a("s_waitcnt lgkmcnt(0)")
            a(f"s_mov_b32 m0, s{sSTAMP+5}")
            a("s_nop 3")
            a(f"v_writelane_b32 v255, s{sSTAMP}, m0")
            a(f"s_add_u32 s{sSTAMP+5}, s{sSTAMP+5}, 1")
            a(f"s_min_u32 s{sSTAMP+5}, s{sSTAMP+5}, 31")
    def issue(S):
        a(f"s_mov_b32 s{sT3}, s{sT2}")
        for k in range(8):
            a(f"s_mov_b64 exec, s[{MK+2*k}:{MK+2*k+1}]")
            a(f"buffer_load_dwordx4 v[{S+4*k}:{S+4*k+3}], v{vT+3}, s[{SRD_R}:{SRD_R+3}], s{sT3} offen {cfg.ld2}")
            if k < 7:
                a(f"s_add_u32 s{sT3}, s{sT3}, {16*R2ROW}")
        a("s_mov_b64 exec, -1")
    mcount = [0]
    def merge(S):
        mcount[0] += 1
        for k in range(8):
            lbl = f"L_mg{mcount[0]}_{k}"
            a(f"s_cmp_eq_u64 s[{MK+2*k}:{MK+2*k+1}], 0")
            a(f"s_cbranch_scc1 {lbl}")
            a(f"v_perm_b32 v{X}, v{S+4*k+1}, v{S+4*k}, s{sPERM}")
            a(f"v_perm_b32 v{X+1}, v{S+4*k+3}, v{S+4*k+2}, s{sPERM}")
            a(f"v_lshl_or_b32 v{X}, v{X+1}, 16, v{X}")
            a(f"v_cmp_eq_u32 vcc, s{sTAG}, v{X}")
            a(f"s_and_b64 exec, vcc, s[{MK+2*k}:{MK+2*k+1}]")
            a(f"s_andn2_b64 s[{MK+2*k}:{MK+2*k+1}], s[{MK+2*k}:{MK+2*k+1}], vcc")
            for r in range(4):
                a(f"v_and_b32 v{F+4*k+r}, 0xffffff00, v{S+4*k+r}")
            a("s_mov_b64 exec, -1")
            a.label(lbl)
        a(f"s_or_b64 s[{MK+16}:{MK+17}], s[{MK}:{MK+1}], s[{MK+2}:{MK+3}]")
        for k in range(2, 8):
            a(f"s_or_b64 s[{MK+16}:{MK+17}], s[{MK+16}:{MK+17}], s[{MK+2*k}:{MK+2*k+1}]")
    a(f"s_not_b32 s{sT3}, s{sTAG}")
    for k in range(8):
        a(f"v_mov_b32 v{SA+4*k}, s{sT3}")
        a(f"v_mov_b32 v{SB+4*k}, s{sT3}")
    a(f"s_mov_b32 s{sSPIN}, {cfg.spin_max}")
    a("s_barrier")
    issue(SB)
    a.label("L_poll2")
    issue(SA)
    a("s_waitcnt vmcnt(8)")
    loopstamp()
    merge(SB)
    a("s_cbranch_scc0 L_poll2_done")
    issue(SB)
    a("s_waitcnt vmcnt(8)")
    loopstamp()
    merge(SA)
    a("s_cbranch_scc0 L_poll2_done")
    a(f"s_sub_u32 s{sSPIN}, s{sSPIN}, 1")
    a(f"s_cmp_eq_u32 s{sSPIN}, 0")
    a("s_cbranch_scc0 L_poll2")
    a.label("L_poll2_done")
    if cfg.stamps:
        a(f"s_sub_u32 s{sSTAMP+4}, {cfg.spin_max}, s{sSPIN}")
        a(f"v_writelane_b32 v255, s{sSTAMP+4}, 14")
    stamp(10)
    for st in (16, 8, 4):
        for k in range(st):
            a(f"v_add_f32 v{F+k}, v{F+k}, v{F+st+k}")
    for rot in (4, 8):
        a("s_nop 0")
        for r in range(4):
            a(f"v_add_f32_dpp v{F+r}, v{F+r}, v{F+r} row_ror:{rot} row_mask:0xf bank_mask:0xf")
    for sw in ("v_permlane16_swap_b32", "v_permlane32_swap_b32"):
        for r in range(4):
            a(f"v_mov_b32 v{F+4+r}, v{F+r}")
        a("s_nop 0")
        for r in range(4):
            a(f"{sw} v{F+r}, v{F+4+r}")
        a("s_nop 0")
        for r in range(4):
            a(f"v_add_f32 v{F+r}, v{F+r}, v{F+4+r}")
    a(f"v_cvt_pk_bf16_f32 v{F+8}, v{F}, v{F+1}")
    a(f"v_cvt_pk_bf16_f32 v{F+9}, v{F+2}, v{F+3}")
    a(f"s_mul_i32 s{sT0}, s{sBRT}, 1280")
    a(f"s_lshr_b32 s{sT1}, s{sRB}, 3")
    a(f"s_lshl_b32 s{sT1}, s{sT1}, 8")
    a(f"s_add_u32 s{sT0}, s{sT0}, s{sT1}")
    a(f"s_and_b32 s{sT1}, s{sRB}, 3")
    a(f"s_lshl_b32 s{sT1}, s{sT1}, 6")
    a(f"s_add_u32 s{sT0}, s{sT0}, s{sT1}")
    a(f"s_bfe_u32 s{sT1}, s{sRB}, 0x10002")
    a(f"s_lshl_b32 s{sT1}, s{sT1}, 3")
    a(f"s_add_u32 s{sT0}, s{sT0}, s{sT1}")
    a(f"v_lshlrev_b32 v{vT+4}, 4, v{vLane}")
    a(f"s_mov_b32 s{SRD_OUT}, s36")
    a(f"s_mov_b32 s{SRD_OUT+1}, s37")
    a(f"s_mov_b32 s{SRD_OUT+2}, 2560")
    a(f"s_mov_b32 s{SRD_OUT+3}, 0x20000")
    a("s_mov_b64 exec, 0xf")
    a(f"buffer_store_dwordx2 v[{F+8}:{F+9}], v{vT+4}, s[{SRD_OUT}:{SRD_OUT+3}], s{sT0} offen")
    a("s_cmp_lg_u32 s2, 0")
    a("s_cbranch_scc1 L_fin2")
    a("s_mov_b64 exec, 1")
    a(f"v_mov_b32 v{vT+5}, 0")
    a(f"v_mov_b32 v{vT+6}, s{sTAG}")
    a(f"global_store_dword v{vT+5}, v{vT+6}, s[40:41] sc1")
    a.label("L_fin2")
    a("s_mov_b64 exec, -1")
    a.label("L_fin")
    if cfg.stamps:
        stamp(11)
        a(f"s_getreg_b32 s{sT0}, hwreg(HW_REG_HW_ID)")
        a(f"s_getreg_b32 s{sT1}, hwreg(HW_REG_XCC_ID)")
        a(f"v_writelane_b32 v255, s{sT0}, 12")
        a(f"v_writelane_b32 v255, s{sT1}, 13")
        a(f"s_lshl_b32 s{sT0}, s2, 3")
        a(f"s_add_u32 s{sT0}, s{sT0}, s{sW}")
        a(f"s_lshl_b32 s{sT0}, s{sT0}, 7")
        a(f"s_add_u32 s{sT0}, s{sT0}, {WS_STAMP}")
        a(f"v_lshlrev_b32 v{vT}, 2, v{vLane}")
        a(f"v_add_u32 v{vT}, s{sT0}, v{vT}")
        a("s_mov_b32 exec_lo, -1")
        a("s_mov_b32 exec_hi, 0")
        a(f"global_store_dword v{vT}, v255, s[40:41]")
        a(f"v_add_u32 v{vT}, {1<<20}, v{vT}")
        a(f"global_store_dword v{vT}, v254, s[40:41]")
    a.label("L_end")
    a("s_endpgm")
    k = kernel_text(NAME + "_kernel", a.text(), 256, 102)
    open(path, "w").write(file_text([(NAME + "_kernel", 256, 512, LDS_BYTES)], [k]))

if __name__ == "__main__":
    cfg = Cfg()
    if "--stamps" in sys.argv: cfg.stamps = True
    if "--inter2" in sys.argv: cfg.pat = "inter2"
    if "--iwTj" in sys.argv: cfg.pat = "iwTj"
    if "--kp2" in sys.argv: cfg.kpart1 = 2
    if "--nofast" in sys.argv: cfg.fastpath = False
    if "--contig" in sys.argv: cfg.pat = "contig"
    if "--noprio" in sys.argv: cfg.prio = False
    if "--st0plain" in sys.argv: cfg.st0 = ""
    if "--nodbg0" in sys.argv: cfg.dbg0 = False
    for x in sys.argv:
        if x.startswith("--thr="): cfg.thr = int(x[6:])
    if "--warm" in sys.argv: cfg.warm = True
    for x in sys.argv:
        if x.startswith("--sleep2="): cfg.sleep2 = int(x[9:])
    for x in sys.argv:
        if x.startswith("--delay2="): cfg.delay2 = int(x[9:])
    for x in sys.argv:
        if x.startswith("--ld2="): cfg.ld2 = x[6:].replace("_", " ")
        if x.startswith("--st2="): cfg.st2 = x[6:].replace("_", " ")
    for x in sys.argv:
        if x.startswith("--abl="): cfg.abl = x[6:]
    for x in sys.argv:
        if x.startswith("--unthr="): cfg.unthr = int(x[8:])
    if "--nokfirst" in sys.argv: cfg.kfirst = False
    if "--wo0" in sys.argv: cfg.wopos = 0
    if "--wonothr" in sys.argv: cfg.wothr = False
    if "--nt" in sys.argv: cfg.fq = cfg.fk = cfg.fv = cfg.fo = "nt"
    gen(sys.argv[1], cfg)
```

```python
import sys
from asmgen import *

class Cfg:
    stamps = False
    fq = ""; fk = ""; fv = ""; fo = ""
    spin_max = 400000
    kpart1 = 1
    sleep0 = 1
    sleep1 = 0
    sleep2 = 0
    pat = "iwTj"
    fastpath = True
    pipe2 = True
    prio = True
    dbg0 = False
    thr = 3
    unthr = 3
    woearly = False
    wopos = 16
    wothr = True
    kfirst = False
    redeven = True
    stE = ''
    pad = 0
    yprio = False
    k0first = False
    fb_rounds = 16
    abl = ''
    ld2 = 'sc1'
    st2 = 'sc1'
    delay2 = 0
    dbgm = False
    warm = False
    qw = 7
    st0 = 'sc1'

sW = 3; sH = 4; sJ = 5
sT0, sT1, sT2, sT3 = 6, 7, 8, 9
sTAG = 10; sSPIN = 11; sRB = 12; sBRT = 13
sMA = 14; sLA = 15
sMB = 42; sLB = 43
SRD_X = 44; SRD_WQ = 48; SRD_KA = 52; SRD_VA = 56; SRD_KB = 60; SRD_VB = 64
SRD_WO = 44
SRD_R = 48
SRD_OUT = 68
sOFF = 72
sMASK = 76
sPERM = 84
sSAME = 85
sRED = 92
sQG = 93
sC = 90
sPROJ = 91
sP0 = 87
sP1 = 88
sP2 = 89
sXCC = 86
sSTAMP = 96

vLane = 0
vLin = 1; vKoff = 2; vWq = 3; vWo = 4
vMask = 5
vT = 9
vS = 10; vN = 11
K = 16; V = 96; Q = 176; C = 208; X = 228

LDS_QPART = 0
LDS_QHL = 4096; QHL_STRIDE = 288
LDS_ML = 5248
LDS_OPART = 5632
LDS_OHL = 13824
LDS_CNT = 14336
LDS_BYTES = 16384
WS_R0 = 4096
WS_R0S = 0x44000
WS_R1 = 0x90000
WS_R2 = 0x120000
R2ROW = 2560
WS_REC_BYTES = WS_R2 + 2*128*R2ROW
WS_STAMP = 4 << 20

def gen(path, cfg):
    a = Asm()
    def stamp(idx):
        if cfg.stamps:
            a(f"s_memrealtime s[{sSTAMP}:{sSTAMP+1}]")
            a("s_waitcnt lgkmcnt(0)")
            a(f"v_writelane_b32 v255, s{sSTAMP}, {idx}")
    def soff(T):
        return "0" if T == 0 else f"s{sOFF+T-1}"
    def ands(dst, src, bc):
        for k in range(4):
            a(f"v_and_b32_dpp v{dst+k}, v{src}, v{vMask+k} row_newbcast:{bc} row_mask:0xf bank_mask:0xf")
    def kvloads(reg, srdA, srdB, voff, T0, T1, fl):
        for T in range(T0, T1):
            for i in range(4):
                r = reg + 16*T + 4*i
                if T < 4:
                    a(f"buffer_load_dwordx4 v[{r}:{r+3}], v{voff}, s[{srdA}:{srdA+3}], {soff(T)} offen offset:{1024*i} {fl}")
                else:
                    a(f"buffer_load_dwordx4 v[{r}:{r+3}], v{voff}, s[{srdB}:{srdB+3}], 0 offen offset:{1024*i} {fl}")

    a("s_cmp_ge_u32 s2, 256")
    a("s_cbranch_scc1 L_end")
    if cfg.stamps:
        a(f"s_memrealtime s[{sSTAMP+2}:{sSTAMP+3}]")
    a("s_load_dwordx16 s[16:31], s[0:1], 0")
    for _ in range(cfg.pad): a("s_nop 0")
    a("s_load_dwordx4 s[32:35], s[0:1], 64")
    a("s_load_dwordx4 s[36:39], s[0:1], 80")
    a("s_load_dwordx2 s[40:41], s[0:1], 96")
    a(f"v_lshrrev_b32 v{vT}, 6, v0")
    a(f"v_and_b32 v{vLane}, 63, v0")
    a(f"v_readfirstlane_b32 s{sW}, v{vT}")
    a(f"s_and_b32 s{sH}, s2, 7")
    a(f"s_lshr_b32 s{sJ}, s2, 3")
    a(f"s_and_b32 s{sT0}, s{sJ}, 24")
    a(f"s_add_u32 s{sH}, s{sH}, s{sT0}")
    a(f"s_and_b32 s{sJ}, s{sJ}, 7")
    a(f"v_lshrrev_b32 v{vS}, 4, v{vLane}")
    a(f"v_and_b32 v{vN}, 15, v{vLane}")
    a(f"v_lshlrev_b32 v{vT+3}, 4, v{vN}")
    a(f"v_lshl_add_u32 v{vWq}, v{vS}, 13, v{vT+3}")
    a(f"v_lshlrev_b32 v{vT+4}, 3, v{vN}")
    a(f"v_lshl_add_u32 v{vT+4}, v{vS}, 1, v{vT+4}")
    a(f"v_lshrrev_b32 v{vT+5}, 2, v{vN}")
    a(f"v_and_b32 v{vT+6}, 3, v{vN}")
    a(f"v_lshlrev_b32 v{vKoff}, 8, v{vT+5}")
    a(f"v_lshl_add_u32 v{vKoff}, v{vS}, 6, v{vKoff}")
    a(f"v_lshl_add_u32 v{vKoff}, v{vT+6}, 4, v{vKoff}")
    a(f"s_and_b32 s{sRB}, s{sJ}, 3")
    a(f"s_lshr_b32 s{sBRT}, s{sJ}, 2")
    a(f"s_mul_i32 s{sT0}, s{sRB}, 160")
    a(f"s_mul_i32 s{sT1}, s{sW}, 20")
    a(f"s_add_u32 s{sT0}, s{sT0}, s{sT1}")
    a(f"s_lshl_b32 s{sT1}, s{sT0}, 13")
    a(f"s_lshl_b32 s{sT2}, s{sH}, 8")
    a(f"s_add_u32 s{sT1}, s{sT1}, s{sT2}")
    a(f"s_lshl_b32 s{sT2}, s{sT0}, 1")
    a(f"s_lshl_b32 s{sT0}, s{sH}, 20")
    a(f"s_lshl_b32 s{sP0}, s{sJ}, 17")
    a(f"s_lshl_b32 s{sT3}, s{sW}, 12")
    a(f"s_add_u32 s{sP0}, s{sP0}, s{sT3}")
    a(f"s_add_u32 s{sP0}, s{sP0}, s{sT0}")
    a(f"s_lshl_b32 s{sP1}, s{sW}, 3")
    a(f"s_add_u32 s{sP1}, s{sP1}, s{sJ}")
    a(f"s_lshl_b32 s{sP1}, s{sP1}, 12")
    a(f"s_add_u32 s{sP1}, s{sP1}, s{sT0}")
    a(f"s_add_u32 s{sP1}, s{sP1}, 786432")
    tstride = 32768
    asz = 3*tstride + 4096
    for t in range(1, 4):
        a(f"s_mov_b32 s{sOFF+t-1}, {tstride*t}")
    a(f"s_mov_b32 s{sP2}, {4*32768}")
    a(f"s_mov_b32 s{SRD_WQ+2}, {19*8192 + 256}")
    a(f"s_mov_b32 s{SRD_WQ+3}, 0x20000")
    a(f"s_sub_u32 s{SRD_X+2}, 1280, s{sT2}")
    a(f"s_mov_b32 s{SRD_X+3}, 0x20000")
    a(f"s_mov_b32 s{SRD_KA+2}, {asz}")
    a(f"s_mov_b32 s{SRD_KA+3}, 0x20000")
    a(f"s_cmp_eq_u32 s{sBRT}, 1")
    a("s_waitcnt lgkmcnt(0)")
    if cfg.stamps:
        a("v_mov_b32 v255, 0")
        a(f"v_writelane_b32 v255, s{sSTAMP+2}, 0")
    a("s_cselect_b64 s[16:17], s[26:27], s[16:17]")
    a("s_cselect_b64 s[22:23], s[32:33], s[22:23]")
    a("s_cselect_b64 s[24:25], s[34:35], s[24:25]")
    a(f"s_add_u32 s{SRD_X}, s16, s{sT2}")
    a(f"s_addc_u32 s{SRD_X+1}, s17, 0")
    a(f"s_add_u32 s{SRD_WQ}, s22, s{sT1}")
    a(f"s_addc_u32 s{SRD_WQ+1}, s23, 0")
    XR0 = X
    WQ = Q
    a(f"buffer_load_ushort v{XR0}, v{vT+4}, s[{SRD_X}:{SRD_X+3}], 0 offen")
    for t in range(5):
        so = "0" if t == 0 else (f"s{sOFF+t-1}" if t < 4 else f"s{sP2}")
        a(f"buffer_load_dwordx4 v[{WQ+4*t}:{WQ+4*t+3}], v{vWq}, s[{SRD_WQ}:{SRD_WQ+3}], {so} offen {cfg.fq}")
    a(f"s_add_u32 s{SRD_KA}, s18, s{sP0}")
    a(f"s_addc_u32 s{SRD_KA+1}, s19, 0")
    KP = cfg.kpart1
    if cfg.k0first:
        kvloads(K, SRD_KA, SRD_KB, vKoff, 0, KP, cfg.fk)
        stamp(1)
    a(f"s_cmp_lg_u32 s{sW}, 0")
    a("s_cbranch_scc1 L_noinit")
    for k in range(4):
        a(f"v_mov_b32 v{X+4+k}, 0")
    a(f"v_mul_u32_u24 v{vT}, {QHL_STRIDE}, v{vLane}")
    a(f"v_mov_b32 v{vT+5}, 0")
    a("s_mov_b64 exec, 0xf")
    a(f"ds_write_b128 v{vT}, v[{X+4}:{X+7}] offset:{LDS_QHL+256}")
    a(f"ds_write_b128 v{vT+5}, v[{X+4}:{X+7}] offset:{LDS_CNT}")
    a(f"ds_write_b128 v{vT+5}, v[{X+4}:{X+7}] offset:{LDS_CNT+16}")
    a("s_mov_b64 exec, -1")
    a("s_waitcnt lgkmcnt(0)")
    a.label("L_noinit")
    a("s_barrier")
    if not cfg.k0first:
        kvloads(K, SRD_KA, SRD_KB, vKoff, 0, KP, cfg.fk)
        stamp(1)
    a(f"s_load_dword s{sTAG}, s[40:41], 0")
    a(f"s_getreg_b32 s{sXCC}, hwreg(HW_REG_XCC_ID)")
    if cfg.redeven:
        a(f"s_and_b32 s{sT0}, s2, 7")
        a(f"s_lshr_b32 s{sT1}, s2, 3")
        a(f"s_lshr_b32 s{sQG}, s{sT0}, 1")
        a(f"s_mul_i32 s{sQG}, s{sQG}, 20")
        a(f"s_add_u32 s{sQG}, s{sQG}, s{sT1}")
        a(f"s_cmp_lt_u32 s{sT1}, 20")
        a(f"s_cselect_b32 s{sRED}, 1, 0")
        a(f"s_bitcmp1_b32 s2, 0")
        a(f"s_cselect_b32 s{sRED}, 0, s{sRED}")
    else:
        a(f"s_and_b32 s{sQG}, s2, 7")
        a(f"s_mul_i32 s{sQG}, s{sQG}, 10")
        a(f"s_lshr_b32 s{sT1}, s2, 3")
        a(f"s_add_u32 s{sQG}, s{sQG}, s{sT1}")
        a("s_cmp_lt_u32 s2, 80")
        a(f"s_cselect_b32 s{sRED}, 1, 0")
    a(f"s_cmp_eq_u32 s{sW}, 7")
    a(f"s_cselect_b32 s{sC}, 4, s{sW}")
    a(f"s_cselect_b32 s{sPROJ}, 1, 0")
    a(f"s_cmp_lt_u32 s{sW}, 4")
    a(f"s_cselect_b32 s{sPROJ}, 1, s{sPROJ}")
    for srd, p, off, sz in ((SRD_VA, 20, sP0, asz), (SRD_KB, 28, sP1, 4096), (SRD_VB, 30, sP1, 4096)):
        a(f"s_add_u32 s{srd}, s{p}, s{off}")
        a(f"s_addc_u32 s{srd+1}, s{p+1}, 0")
        a(f"s_mov_b32 s{srd+2}, {sz}")
        a(f"s_mov_b32 s{srd+3}, 0x20000")
    a(f"v_lshlrev_b32 v{vLin}, 4, v{vLane}")
    a(f"v_mul_u32_u24 v{vWo}, 1280, v{vS}")
    a(f"v_add_u32 v{vWo}, v{vWo}, v{vT+3}")
    vQA = X + 23
    a(f"v_lshlrev_b32 v{vT+3}, 6, v{vS}")
    a(f"v_lshl_add_u32 v{vT+3}, v{vT+6}, 4, v{vT+3}")
    a(f"v_mov_b32 v{vT+4}, 256")
    for i in range(4):
        pat = 0x000f000f << (4*i)
        a(f"s_mov_b32 s{sMASK+2*i}, 0x{pat:08x}")
        a(f"s_mov_b32 s{sMASK+2*i+1}, 0x{pat:08x}")
    for i in range(4):
        a(f"v_cndmask_b32_e64 v{vQA+i}, v{vT+4}, v{vT+3}, s[{sMASK+2*i}:{sMASK+2*i+1}]")
    a(f"v_and_b32 v{vT+5}, 1, v{vLane}")
    a(f"v_lshlrev_b32 v{vT+5}, 4, v{vT+5}")
    a(f"v_mov_b32 v{vT+6}, 0xffff")
    a(f"v_lshlrev_b32 v{vT+5}, v{vT+5}, v{vT+6}")
    for k, pat in enumerate((0x03030303, 0x0c0c0c0c, 0x30303030, 0xc0c0c0c0)):
        a(f"s_mov_b32 s{sMASK+2*k}, 0x{pat:08x}")
        a(f"s_mov_b32 s{sMASK+2*k+1}, 0x{pat:08x}")
    for k in range(4):
        a(f"v_cndmask_b32_e64 v{vMask+k}, 0, v{vT+5}, s[{sMASK+2*k}:{sMASK+2*k+1}]")
    AOP = [C, C + 4]; QC = C + 8
    a(f"s_waitcnt vmcnt({5+4*KP})")
    a(f"v_lshl_or_b32 v{XR0}, v{XR0}, 16, v{XR0}")
    a("s_nop 1")
    ands(AOP[0], XR0, 0)
    for t in range(5):
        if t + 1 < 5:
            ands(AOP[(t+1) % 2], XR0, t+1)
        else:
            a("s_nop 1")
        a(f"s_waitcnt vmcnt({4*KP + 4 - t})")
        c = "0" if t == 0 else f"v[{QC}:{QC+3}]"
        a(f"v_mfma_f32_16x16x32_bf16 v[{QC}:{QC+3}], v[{AOP[t%2]}:{AOP[t%2]+3}], v[{WQ+4*t}:{WQ+4*t+3}], {c}")
    vPA = X + 22
    a(f"v_lshlrev_b32 v{vPA}, 5, v{vN}")
    a(f"v_lshl_add_u32 v{vPA}, v{vS}, 4, v{vPA}")
    a(f"s_lshl_b32 s{sT0}, s{sW}, 9")
    a(f"v_add_u32 v{vPA}, s{sT0}, v{vPA}")
    a(f"s_mov_b32 s{SRD_R}, s40")
    a(f"s_mov_b32 s{SRD_R+1}, s41")
    a(f"s_mov_b32 s{SRD_R+2}, {WS_REC_BYTES}")
    a(f"s_mov_b32 s{SRD_R+3}, 0x20000")
    a(f"v_mov_b32 v{vT+5}, 0")
    a(f"v_mov_b32 v{vT+6}, 1")
    a("s_mov_b32 exec_hi, 0")
    a("s_nop 0")
    a(f"ds_write_b128 v{vPA}, v[{QC}:{QC+3}] offset:{LDS_QPART}")
    a("s_mov_b64 exec, 1")
    a(f"ds_add_u32 v{vT+5}, v{vT+6} offset:{LDS_CNT}")
    a("s_mov_b64 exec, -1")
    a("s_waitcnt lgkmcnt(0)")
    a(f"s_add_u32 s{sTAG}, s{sTAG}, 1")
    stamp(2)
    a(f"s_cmp_lg_u32 s{sW}, {cfg.qw}")
    a("s_cbranch_scc1 L_bulk")
    if cfg.prio: a("s_setprio 3")
    if cfg.kfirst:
        kvloads(K, SRD_KA, SRD_KB, vKoff, KP, 5, cfg.fk)
    a.label("L_cntq")
    a(f"ds_read_b32 v{vT+6}, v{vT+5} offset:{LDS_CNT}")
    a("s_waitcnt lgkmcnt(0)")
    a(f"v_cmp_ne_u32 vcc, 8, v{vT+6}")
    a("s_cbranch_vccz L_cntq_done")
    a("s_sleep 1")
    a("s_branch L_cntq")
    a.label("L_cntq_done")
    QS = C
    a(f"v_lshlrev_b32 v{vT+3}, 3, v{vLane}")
    for w in range(8):
        a(f"ds_read_b64 v[{QS+2*w}:{QS+2*w+1}], v{vT+3} offset:{LDS_QPART+512*w}")
    a("s_waitcnt lgkmcnt(0)")
    for st in (8, 4, 2):
        for k in range(0, st, 2):
            a(f"v_add_f32 v{QS+k}, v{QS+k}, v{QS+st+k}")
            a(f"v_add_f32 v{QS+k+1}, v{QS+k+1}, v{QS+st+k+1}")
    G = X + 4
    a(f"v_mov_b32 v{G}, v{QS}")
    a(f"v_mov_b32 v{G+1}, v{QS+1}")
    a(f"v_mov_b32 v{G+2}, s{sXCC}")
    a(f"v_mov_b32 v{G+3}, s{sTAG}")
    a(f"s_lshl_b32 s{sT0}, s{sH}, 13")
    a(f"s_add_u32 s{sT0}, s{sT0}, {WS_R0}")
    a(f"s_lshl_b32 s{sT1}, s{sJ}, 10")
    a(f"s_add_u32 s{sT1}, s{sT1}, s{sT0}")
    stamp(16)
    if 'x' in cfg.abl:
        a("s_branch L_abl_flag")
    a(f"buffer_store_dwordx4 v[{G}:{G+3}], v{vLin}, s[{SRD_R}:{SRD_R+3}], s{sT1} offen")
    a(f"s_add_u32 s{sP0}, s{sT1}, {WS_R0S - WS_R0}")
    a(f"s_mov_b32 s{sP1}, 0")
    F = Q
    a(f"s_xor_b32 s{sT3}, s{sTAG}, 1")
    for k in range(8):
        a(f"v_mov_b32 v{F+4*k+3}, s{sT3}")
    a(f"s_mov_b32 s{sSPIN}, 0")
    a.label("L_poll0")
    a(f"s_mov_b32 s{sT3}, s{sT0}")
    a(f"s_cmp_lt_u32 s{sSPIN}, {cfg.fb_rounds}")
    a("s_cbranch_scc1 L_p0go")
    a(f"s_cmp_eq_u32 s{sP1}, 1")
    a("s_cbranch_scc1 L_p0alt")
    a(f"buffer_store_dwordx4 v[{G}:{G+3}], v{vLin}, s[{SRD_R}:{SRD_R+3}], s{sP0} offen sc1")
    a(f"s_mov_b32 s{sP1}, 1")
    a.label("L_p0alt")
    a(f"s_bitcmp1_b32 s{sSPIN}, 0")
    a("s_cbranch_scc0 L_p0go")
    a(f"s_add_u32 s{sT3}, s{sT3}, {WS_R0S - WS_R0}")
    a.label("L_p0go")
    for k in range(8):
        a(f"v_cmp_ne_u32 vcc, s{sTAG}, v{F+4*k+3}")
        a("s_mov_b64 exec, vcc")
        a(f"s_cbranch_execz L_p0skip{k}")
        a(f"buffer_load_dwordx4 v[{F+4*k}:{F+4*k+3}], v{vLin}, s[{SRD_R}:{SRD_R+3}], s{sT3} offen sc1")
        a.label(f"L_p0skip{k}")
        a("s_mov_b64 exec, -1")
        if k < 7:
            a(f"s_add_u32 s{sT3}, s{sT3}, 1024")
    a("s_waitcnt vmcnt(0)")
    a(f"v_xor_b32 v{vT+6}, s{sTAG}, v{F+3}")
    for k in range(1, 8):
        a(f"v_xor_b32 v{vT+4}, s{sTAG}, v{F+4*k+3}")
        a(f"v_or_b32 v{vT+6}, v{vT+6}, v{vT+4}")
    a(f"v_cmp_ne_u32 vcc, 0, v{vT+6}")
    a("s_cbranch_vccz L_poll0_done")
    a(f"s_add_u32 s{sSPIN}, s{sSPIN}, 1")
    a(f"s_cmp_lt_u32 s{sSPIN}, {cfg.spin_max}")
    a("s_cbranch_scc1 L_poll0")
    a.label("L_poll0_done")
    stamp(18)
    if cfg.stamps:
        a(f"v_writelane_b32 v255, s{sSPIN}, 14")
    a(f"v_xor_b32 v{vT+6}, s{sXCC}, v{F+2}")
    for k in range(1, 8):
        a(f"v_xor_b32 v{vT+4}, s{sXCC}, v{F+4*k+2}")
        a(f"v_or_b32 v{vT+6}, v{vT+6}, v{vT+4}")
    a(f"v_cmp_ne_u32 vcc, 0, v{vT+6}")
    a(f"s_cmp_eq_u64 vcc, 0")
    a(f"s_cselect_b32 s{sSAME}, 1, 0")
    a(f"s_or_b32 s{sT3}, s{sSAME}, s{sP1}")
    a(f"s_cmp_eq_u32 s{sT3}, 0")
    a("s_cbranch_scc0 L_p0noslow")
    a(f"buffer_store_dwordx4 v[{G}:{G+3}], v{vLin}, s[{SRD_R}:{SRD_R+3}], s{sP0} offen sc1")
    a.label("L_p0noslow")
    a(f"s_mov_b32 s{sT0}, 0x3e0293ee")
    a(f"s_mov_b32 s{sPERM}, 0x07060302")
    a(f"v_lshlrev_b32 v{vT+3}, 2, v{vLane}")
    for br in range(2):
        f = F + 16*br
        for e in (0, 1):
            a(f"v_add_f32 v{f+e}, v{f+e}, v{f+4+e}")
            a(f"v_add_f32 v{f+8+e}, v{f+8+e}, v{f+12+e}")
        for e in (0, 1):
            a(f"v_add_f32 v{f+e}, v{f+e}, v{f+8+e}")
        for e in (0, 1):
            a(f"v_mul_f32 v{f+e}, s{sT0}, v{f+e}")
        a(f"v_perm_b32 v{f+4}, v{f+1}, v{f}, s{sPERM}")
        a(f"v_and_b32 v{f+5}, 0xffff0000, v{f}")
        a(f"v_and_b32 v{f+6}, 0xffff0000, v{f+1}")
        a(f"v_sub_f32 v{f+5}, v{f}, v{f+5}")
        a(f"v_sub_f32 v{f+6}, v{f+1}, v{f+6}")
        a(f"v_cvt_pk_bf16_f32 v{f+5}, v{f+5}, v{f+6}")
        a(f"ds_write_b32 v{vT+3}, v{f+4} offset:{LDS_QHL + (2*br)*QHL_STRIDE}")
        a(f"ds_write_b32 v{vT+3}, v{f+5} offset:{LDS_QHL + (2*br+1)*QHL_STRIDE}")
    a.label("L_abl_flag")
    a(f"v_mov_b32 v{vT+5}, 1")
    a(f"v_mov_b32 v{vT+6}, s{sSAME}")
    a(f"v_mov_b32 v{vT+4}, 0")
    a("s_mov_b64 exec, 1")
    a(f"ds_write_b64 v{vT+4}, v[{vT+5}:{vT+6}] offset:{LDS_CNT+8}")
    a("s_mov_b64 exec, -1")
    if cfg.kfirst:
        if cfg.prio: a("s_setprio 0")
        a("s_branch L_afterK")
    a.label("L_bulk")
    if cfg.prio: a("s_setprio 0")
    def thr():
        a(f"s_waitcnt vmcnt({cfg.thr})")
    a(f"s_cmp_eq_u32 s{sW}, {cfg.qw}")
    for T in range(KP, 5):
        a(f"s_cbranch_scc1 L_nothr{T}")
        thr()
        a.label(f"L_nothr{T}")
        kvloads(K, SRD_KA, SRD_KB, vKoff, T, T + 1, cfg.fk)
    a.label("L_afterK")
    if cfg.yprio:
        a(f"s_cmp_ge_u32 s{sW}, 4")
        a("s_cbranch_scc0 L_noyp")
        a("s_setprio 1")
        a.label("L_noyp")
    stamp(3)
    thr()
    kvloads(V, SRD_VA, SRD_VB, vLin, 0, 1, cfg.fv)
    a(f"v_mov_b32 v{vT+4}, 0")
    a.label("L_flagq")
    a(f"ds_read_b64 v[{vT+5}:{vT+6}], v{vT+4} offset:{LDS_CNT+8}")
    a("s_waitcnt lgkmcnt(0)")
    a(f"v_cmp_ne_u32 vcc, 1, v{vT+5}")
    a("s_cbranch_vccz L_flagq_done")
    a("s_sleep 2")
    a("s_branch L_flagq")
    a.label("L_flagq_done")
    a(f"v_readfirstlane_b32 s{sSAME}, v{vT+6}")
    stamp(4)
    def consts(br):
        for i in range(4):
            a(f"ds_read_b128 v[{Q+8*i}:{Q+8*i+3}], v{vQA+i} offset:{LDS_QHL + (2*br)*QHL_STRIDE}")
            a(f"ds_read_b128 v[{Q+8*i+4}:{Q+8*i+7}], v{vQA+i} offset:{LDS_QHL + (2*br+1)*QHL_STRIDE}")
    def qk(T):
        c = C + 4*T
        for i in range(4):
            r = K + 16*T + 4*i
            cin = "0" if i == 0 else f"v[{c}:{c+3}]"
            if 'q' in cfg.abl: continue
            a(f"v_mfma_f32_16x16x32_bf16 v[{c}:{c+3}], v[{r}:{r+3}], v[{Q+8*i}:{Q+8*i+3}], {cin}")
            a(f"v_mfma_f32_16x16x32_bf16 v[{c}:{c+3}], v[{r}:{r+3}], v[{Q+8*i+4}:{Q+8*i+7}], v[{c}:{c+3}]")
    a(f"s_lshl_b32 s{sT1}, s{sH}, 7")
    a(f"s_lshl_b32 s{sT2}, s{sRB}, 5")
    a(f"s_add_u32 s{sT1}, s{sT1}, s{sT2}")
    a(f"s_mul_i32 s{sT1}, s{sT1}, 1280")
    a(f"s_lshl_b32 s{sT0}, s{sC}, 8")
    a(f"s_add_u32 s{sT0}, s{sT0}, s{sT1}")
    a(f"s_add_u32 s{SRD_WO}, s24, s{sT0}")
    a(f"s_addc_u32 s{SRD_WO+1}, s25, 0")
    a(f"s_cmp_eq_u32 s{sPROJ}, 1")
    a(f"s_cselect_b32 s{SRD_WO+2}, {31*1280 + 256}, 0")
    a(f"s_mov_b32 s{SRD_WO+3}, 0x20000")
    WO = K
    def woloads(t0, t1):
        for t in range(t0, t1):
            r = WO + 4*t
            so = "0"
            if t > 0:
                a(f"s_movk_i32 s{sT1}, {5120*t}" if 5120*t < 32768 else f"s_mov_b32 s{sT1}, {5120*t}")
                so = f"s{sT1}"
            a(f"buffer_load_dwordx4 v[{r}:{r+3}], v{vWo}, s[{SRD_WO}:{SRD_WO+3}], {so} offen {cfg.fo}")
    consts(0)
    a("s_waitcnt vmcnt(8) lgkmcnt(0)")
    for T in range(4):
        qk(T)
        if T == 3:
            consts(1)
        if T + 1 < cfg.unthr: thr()
        kvloads(V, SRD_VA, SRD_VB, vLin, T + 1, T + 2, cfg.fv)
    if cfg.woearly:
        woloads(0, 8)
        stamp(5)
        a(f"s_waitcnt vmcnt(24) lgkmcnt(0)")
    else:
        a(f"s_waitcnt vmcnt(16) lgkmcnt(0)")
    qk(4)
    a(f"s_mov_b32 s{sMASK}, 0xaaaaaaaa"); a(f"s_mov_b32 s{sMASK+1}, 0xaaaaaaaa")
    a(f"s_mov_b32 s{sMASK+2}, 0xcccccccc"); a(f"s_mov_b32 s{sMASK+3}, 0xcccccccc")
    T0 = X; T1 = X + 5; SC = X + 10; PK = X + 15; MX = X + 20
    for T in range(5):
        c = C + 4*T
        a(f"v_cndmask_b32_e64 v{T0+T}, v{c}, v{c+1}, s[{sMASK}:{sMASK+1}]")
        a(f"v_cndmask_b32_e64 v{T1+T}, v{c+2}, v{c+3}, s[{sMASK}:{sMASK+1}]")
    for T in range(5):
        a(f"v_cndmask_b32_e64 v{SC+T}, v{T0+T}, v{T1+T}, s[{sMASK+2}:{sMASK+3}]")
    for T in range(5):
        a(f"v_add_f32_dpp v{SC+T}, v{SC+T}, v{SC+T} quad_perm:[1,0,3,2] row_mask:0xf bank_mask:0xf")
    for T in range(5):
        a(f"v_add_f32_dpp v{SC+T}, v{SC+T}, v{SC+T} quad_perm:[2,3,0,1] row_mask:0xf bank_mask:0xf")
    a(f"v_max3_f32 v{MX}, v{SC}, v{SC+1}, v{SC+2}")
    a(f"v_mov_b32 v{MX+1}, v{SC+4}")
    a(f"v_max_f32 v{MX}, v{MX}, v{SC+3}")
    def wave_reduce2(op, r0, r1, s0, s1):
        for mod in ("row_ror:4 row_mask:0xf", "row_ror:8 row_mask:0xf", "row_bcast:15 row_mask:0xa", "row_bcast:31 row_mask:0xc"):
            a("s_nop 0")
            a(f"{op}_dpp v{r1}, v{r1}, v{r1} {mod} bank_mask:0xf")
            a(f"{op}_dpp v{r0}, v{r0}, v{r0} {mod} bank_mask:0xf")
        a(f"v_readlane_b32 s{s1}, v{r1}, 63")
        a(f"v_readlane_b32 s{s0}, v{r0}, 63")
        a("s_nop 1")
    a("s_nop 0")
    wave_reduce2("v_max_f32", MX, MX + 1, sMA, sMB)
    for T in range(5):
        a(f"v_subrev_f32 v{SC+T}, s{sMA if T < 4 else sMB}, v{SC+T}")
    for T in range(5):
        a(f"v_exp_f32 v{SC+T}, v{SC+T}")
    a("s_nop 0")
    for T in range(5):
        a(f"v_cvt_pk_bf16_f32 v{PK+T}, v{SC+T}, v{SC+T}")
    for T in range(5):
        a(f"v_and_b32 v{SC+T}, 0xffff0000, v{PK+T}")
    a(f"v_add_f32 v{SC}, v{SC}, v{SC+1}")
    a(f"v_add_f32 v{SC+2}, v{SC+2}, v{SC+3}")
    a(f"v_add_f32 v{SC}, v{SC}, v{SC+2}")
    a("s_nop 0")
    wave_reduce2("v_add_f32", SC, SC + 4, sLA, sLB)
    a(f"s_lshl_b32 s{sT0}, s{sW}, 3")
    a(f"v_mov_b32 v{vT+6}, s{sT0}")
    a(f"v_mov_b32 v{X}, s{sMA}")
    a(f"v_mov_b32 v{X+1}, s{sLA}")
    a(f"v_mov_b32 v{X+2}, s{sMB}")
    a(f"v_mov_b32 v{X+3}, s{sLB}")
    a(f"v_mov_b32 v{vT+4}, 0")
    a(f"v_mov_b32 v{vT+5}, 1")
    a("s_mov_b64 exec, 1")
    a(f"ds_write_b64 v{vT+6}, v[{X}:{X+1}] offset:{LDS_ML}")
    a(f"ds_write_b64 v{vT+6}, v[{X+2}:{X+3}] offset:{LDS_ML+64}")
    a(f"ds_add_u32 v{vT+4}, v{vT+5} offset:{LDS_CNT+4}")
    a("s_mov_b64 exec, -1")
    AO = [Q, Q + 4]; OCA = Q + 8; OCB = Q + 12
    sWG = 52
    LSE = X + 8
    def early_weights():
        a(f"s_cmp_lt_u32 s{sW}, 5")
        a("s_cbranch_scc1 L_noew")
        a(f"s_cmp_eq_u32 s{sW}, 7")
        a("s_cbranch_scc1 L_noew")
        a(f"v_mov_b32 v{vT+4}, 0")
        a.label("L_cntml")
        a(f"ds_read_b32 v{vT+5}, v{vT+4} offset:{LDS_CNT+4}")
        a("s_waitcnt lgkmcnt(0)")
        a(f"v_cmp_ne_u32 vcc, 8, v{vT+5}")
        a("s_cbranch_vccz L_cntml_done")
        a("s_sleep 1")
        a("s_branch L_cntml")
        a.label("L_cntml_done")
        a(f"s_sub_u32 s{sT2}, s{sW}, 5")
        a(f"s_lshl_b32 s{sT0}, s{sT2}, 6")
        a(f"v_and_b32 v{vT+4}, 7, v{vLane}")
        a(f"v_lshlrev_b32 v{vT+4}, 3, v{vT+4}")
        a(f"v_add_u32 v{vT+4}, s{sT0}, v{vT+4}")
        EM = X + 4; EL = X + 5; ET = X + 6; EU = X + 7
        a(f"ds_read_b64 v[{EM}:{EL}], v{vT+4} offset:{LDS_ML}")
        a("s_waitcnt lgkmcnt(0)")
        a(f"v_mov_b32 v{ET}, v{EM}")
        for mod in ("quad_perm:[1,0,3,2]", "quad_perm:[2,3,0,1]", "row_half_mirror"):
            a("s_nop 1")
            a(f"v_max_f32_dpp v{ET}, v{ET}, v{ET} {mod} row_mask:0xf bank_mask:0xf")
        a(f"v_sub_f32 v{EM}, v{EM}, v{ET}")
        a(f"v_exp_f32 v{EM}, v{EM}")
        a("s_nop 0")
        a(f"v_mul_f32 v{EU}, v{EM}, v{EL}")
        for mod in ("quad_perm:[1,0,3,2]", "quad_perm:[2,3,0,1]", "row_half_mirror"):
            a("s_nop 1")
            a(f"v_add_f32_dpp v{EU}, v{EU}, v{EU} {mod} row_mask:0xf bank_mask:0xf")
        a(f"v_rcp_f32 v{EL}, v{EU}")
        a(f"v_log_f32 v{LSE}, v{EU}")
        a("s_nop 0")
        a(f"v_mul_f32 v{EM}, v{EM}, v{EL}")
        a(f"v_add_f32 v{LSE}, v{LSE}, v{ET}")
        a("s_nop 0")
        for w in range(8):
            a(f"v_readlane_b32 s{sWG+w}, v{EM}, {w}")
        a.label("L_noew")
    steps = [(T, t) for T in range(5) for t in range(4)]
    ands(AO[0], PK + 0, 0)
    for idx, (T, t) in enumerate(steps):
        if idx + 1 < len(steps):
            T2, t2 = steps[idx+1]
            ands(AO[(idx+1) % 2], PK + T2, 4*t2)
        else:
            a("s_nop 1")
        if idx == 0:
            if cfg.wopos == 0 and not cfg.woearly:
                woloads(0, 8)
                stamp(5)
            a(f"s_waitcnt vmcnt({12 if (cfg.woearly or cfg.wopos == 0) else 4})")
        if idx == 16:
            if not cfg.woearly and cfg.wopos == 16 and not cfg.wothr:
                woloads(0, 8)
                stamp(5)
            early_weights()
            if not cfg.woearly and cfg.wopos == 16 and cfg.wothr:
                thr()
                woloads(0, 8)
                stamp(5)
            a("s_waitcnt vmcnt(8)")
        r = V + 16*T + 4*t
        oc = OCA if T < 4 else OCB
        c = "0" if idx in (0, 16) else f"v[{oc}:{oc+3}]"
        a(f"v_mfma_f32_16x16x32_bf16 v[{oc}:{oc+3}], v[{AO[idx%2]}:{AO[idx%2]+3}], v[{r}:{r+3}], {c}")
    a("s_mov_b32 exec_hi, 0")
    a(f"ds_write_b128 v{vPA}, v[{OCA}:{OCA+3}] offset:{LDS_OPART}")
    a("s_nop 6")
    a(f"ds_write_b128 v{vPA}, v[{OCB}:{OCB+3}] offset:{LDS_OPART+4096}")
    a("s_mov_b64 exec, -1")
    a(f"s_lshl_b32 s{sT1}, s{sH}, 1")
    a(f"s_add_u32 s{sT1}, s{sT1}, s{sBRT}")
    a(f"s_lshl_b32 s{sT1}, s{sT1}, 13")
    a(f"s_lshl_b32 s{sT2}, s{sRB}, 8")
    a(f"s_add_u32 s{sT1}, s{sT1}, s{sT2}")
    a(f"s_add_u32 s{sP1}, s{sT1}, {WS_R1}")
    a(f"s_lshl_b32 s{sT0}, s{sBRT}, 7")
    a(f"s_lshl_b32 s{sT1}, s{sH}, 2")
    a(f"s_add_u32 s{sT0}, s{sT0}, s{sT1}")
    a(f"s_add_u32 s{sT0}, s{sT0}, s{sRB}")
    a(f"s_mul_i32 s{sT0}, s{sT0}, {R2ROW}")
    a(f"s_lshl_b32 s{sT1}, s{sC}, 9")
    a(f"s_add_u32 s{sT0}, s{sT0}, s{sT1}")
    a(f"s_add_u32 s{sP2}, s{sT0}, {WS_R2}")
    a(f"s_sub_u32 s{sT2}, s{sW}, 5")
    a(f"s_lshl_b32 s{sT0}, s{sH}, 1")
    a(f"s_add_u32 s{sT0}, s{sT0}, s{sT2}")
    a(f"s_lshl_b32 s{sT0}, s{sT0}, 3")
    a(f"s_add_u32 s{sT0}, s{sT0}, s{sJ}")
    a(f"s_lshl_b32 s{sT0}, s{sT0}, 10")
    a(f"s_add_u32 s{sP0}, s{sT0}, {WS_R1}")
    a(f"s_lshl_b32 s{sT0}, s{sT2}, 12")
    a(f"v_lshlrev_b32 v{vT+4}, 3, v{vLane}")
    a(f"v_add_u32 v{vT+4}, s{sT0}, v{vT+4}")
    a("s_waitcnt lgkmcnt(0)")
    a("s_barrier")
    stamp(6)
    if 'e' in cfg.abl:
        a("s_waitcnt vmcnt(0)")
        stamp(9)
        a("s_branch L_fin")
    a(f"s_cmp_eq_u32 s{sPROJ}, 1")
    a("s_cbranch_scc1 L_proj")
    a(f"s_cmp_eq_u32 s{sW}, 4")
    a("s_cbranch_scc1 L_no_proj")
    OP = V
    for w in range(8):
        a(f"ds_read_b64 v[{OP+2*w}:{OP+2*w+1}], v{vT+4} offset:{LDS_OPART+512*w}")
    G = X + 4
    a(f"v_mov_b32 v{G+2}, v{LSE}")
    a(f"v_mov_b32 v{G+3}, s{sTAG}")
    a(f"v_mov_b32 v{vT+5}, 0")
    a(f"v_mov_b32 v{vT+6}, 1")
    for w in range(8):
        if w % 2 == 0:
            a(f"s_waitcnt lgkmcnt({6 - w})")
        if w == 0:
            a(f"v_mul_f32 v{G}, s{sWG}, v{OP}")
            a(f"v_mul_f32 v{G+1}, s{sWG}, v{OP+1}")
        else:
            a(f"v_fmac_f32 v{G}, s{sWG+w}, v{OP+2*w}")
            a(f"v_fmac_f32 v{G+1}, s{sWG+w}, v{OP+2*w+1}")
    a(f"s_cmp_eq_u32 s{sSAME}, 1")
    a("s_cbranch_scc1 L_pub1_fast")
    a(f"buffer_store_dwordx4 v[{G}:{G+3}], v{vLin}, s[{SRD_R}:{SRD_R+3}], s{sP0} offen sc1")
    a("s_branch L_pub1_done")
    a.label("L_pub1_fast")
    a(f"buffer_store_dwordx4 v[{G}:{G+3}], v{vLin}, s[{SRD_R}:{SRD_R+3}], s{sP0} offen")
    a.label("L_pub1_done")
    a("s_mov_b64 exec, 1")
    a(f"ds_add_u32 v{vT+5}, v{vT+6} offset:{LDS_CNT+16}")
    a("s_mov_b64 exec, -1")
    stamp(7)
    a("s_branch L_fin")
    a.label("L_proj")
    GR = V
    vP1 = vT + 3
    a(f"v_and_b32 v{vP1}, 7, v{vN}")
    a(f"v_lshlrev_b32 v{vP1}, 5, v{vP1}")
    a(f"v_lshrrev_b32 v{vT+4}, 1, v{vS}")
    a(f"v_lshl_add_u32 v{vP1}, v{vT+4}, 4, v{vP1}")
    TB = sMASK + 2
    a(f"s_lshr_b32 s{TB+1}, s{sTAG}, 8")
    a(f"s_lshr_b32 s{TB+2}, s{sTAG}, 16")
    a(f"s_lshr_b32 s{TB+3}, s{sTAG}, 24")
    a(f"s_mov_b32 s{sMASK}, 0xffff0000")
    a(f"s_mov_b32 s{sMASK+1}, 0xffff0000")
    a(f"v_mov_b32 v{vT+5}, 0xff")
    a(f"v_mov_b32 v{vT+4}, 0")
    a(f"s_mov_b32 s{sSPIN}, {cfg.spin_max}")
    a.label("L_cntpub")
    a(f"ds_read_b32 v{vT+6}, v{vT+4} offset:{LDS_CNT+16}")
    a("s_waitcnt lgkmcnt(0)")
    a(f"v_cmp_ne_u32 vcc, 2, v{vT+6}")
    a("s_cbranch_vccnz L_cntpub")
    a.label("L_poll1")
    a(f"s_mov_b32 s{sT3}, s{sP1}")
    for i in range(8):
        a(f"buffer_load_dwordx4 v[{GR+4*i}:{GR+4*i+3}], v{vP1}, s[{SRD_R}:{SRD_R+3}], s{sT3} offen sc1")
        if i < 7:
            a(f"s_add_u32 s{sT3}, s{sT3}, 1024")
    a("s_waitcnt vmcnt(0)")
    a(f"v_xor_b32 v{X}, s{sTAG}, v{GR+3}")
    for i in range(1, 8):
        a(f"v_xor_b32 v{X+1}, s{sTAG}, v{GR+4*i+3}")
        a(f"v_or_b32 v{X}, v{X}, v{X+1}")
    a(f"v_cmp_ne_u32 vcc, 0, v{X}")
    if 'h' in cfg.abl: a("s_branch L_poll1_done")
    a("s_cbranch_vccz L_poll1_done")
    a(f"s_sub_u32 s{sSPIN}, s{sSPIN}, 1")
    a(f"s_cmp_eq_u32 s{sSPIN}, 0")
    a("s_cbranch_scc0 L_poll1")
    a.label("L_poll1_done")
    stamp(17)
    MM = X + 2; G = X + 4
    a(f"v_max3_f32 v{MM}, v{GR+2}, v{GR+6}, v{GR+10}")
    a(f"v_max3_f32 v{MM}, v{MM}, v{GR+14}, v{GR+18}")
    a(f"v_max3_f32 v{MM}, v{MM}, v{GR+22}, v{GR+26}")
    a(f"v_max_f32 v{MM}, v{MM}, v{GR+30}")
    for i in range(8):
        a(f"v_sub_f32 v{GR+4*i+2}, v{GR+4*i+2}, v{MM}")
    for i in range(8):
        a(f"v_exp_f32 v{GR+4*i+2}, v{GR+4*i+2}")
    a("s_nop 0")
    a(f"v_mul_f32 v{G}, v{GR+2}, v{GR}")
    a(f"v_mul_f32 v{G+1}, v{GR+2}, v{GR+1}")
    a(f"v_mov_b32 v{G+2}, v{GR+2}")
    for i in range(1, 8):
        a(f"v_fmac_f32 v{G}, v{GR+4*i+2}, v{GR+4*i}")
        a(f"v_fmac_f32 v{G+1}, v{GR+4*i+2}, v{GR+4*i+1}")
        a(f"v_add_f32 v{G+2}, v{G+2}, v{GR+4*i+2}")
    a(f"v_rcp_f32 v{G+2}, v{G+2}")
    a(f"v_cndmask_b32_e64 v{G}, v{G}, v{G+1}, s[{sMASK}:{sMASK+1}]")
    a(f"v_mul_f32 v{G}, v{G}, v{G+2}")
    OPK = X + 8
    a(f"v_cvt_pk_bf16_f32 v{OPK}, v{G}, v{G}")
    a("s_nop 1")
    AO2 = [Q, Q + 4]; C0 = Q + 16
    ands(AO2[0], OPK, 0)
    for t in range(8):
        if t + 1 < 8:
            ands(AO2[(t+1) % 2], OPK, t + 1)
        else:
            a("s_nop 1")
        c = "0" if t == 0 else f"v[{C0}:{C0+3}]"
        a(f"v_mfma_f32_16x16x32_bf16 v[{C0}:{C0+3}], v[{AO2[t%2]}:{AO2[t%2]+3}], v[{WO+4*t}:{WO+4*t+3}], {c}")
    a("s_nop 7")
    PB = X + 4
    for r in range(4):
        src = sTAG if r == 0 else TB + r
        a(f"v_bfi_b32 v{PB+r}, v{vT+5}, s{src}, v{C0+r}")
    a("s_mov_b32 exec_hi, 0")
    a(f"buffer_store_dwordx4 v[{PB}:{PB+3}], v{vLin}, s[{SRD_R}:{SRD_R+3}], s{sP2} offen {cfg.st2}")
    a("s_mov_b64 exec, -1")
    stamp(10)
    a(f"s_cmp_eq_u32 s{sRED}, 0")
    a("s_cbranch_scc1 L_noE")
    if 'n' not in cfg.abl: a("s_barrier")
    a.label("L_noE")
    if cfg.stamps:
        a("s_waitcnt vmcnt(0)")
        stamp(19)
    a("s_branch L_fin")
    a.label("L_no_proj")
    a(f"s_cmp_lg_u32 s{sW}, 4")
    a("s_cbranch_scc1 L_fin")
    if 'n' in cfg.abl: a("s_branch L_fin")
    a(f"s_cmp_eq_u32 s{sRED}, 0")
    a("s_cbranch_scc1 L_fin")
    a(f"s_mov_b32 s{sT0}, s{sQG}")
    a(f"s_cmp_ge_u32 s{sT0}, 40")
    a(f"s_cselect_b32 s{sBRT}, 1, 0")
    a(f"s_mul_i32 s{sT1}, s{sBRT}, 40")
    a(f"s_sub_u32 s{sRB}, s{sT0}, s{sT1}")
    a(f"s_mul_i32 s{sT2}, s{sBRT}, {128*R2ROW}")
    a(f"s_lshl_b32 s{sT3}, s{sRB}, 6")
    a(f"s_add_u32 s{sT2}, s{sT2}, s{sT3}")
    a(f"s_add_u32 s{sT2}, s{sT2}, {WS_R2}")
    a(f"v_lshrrev_b32 v{vT+3}, 2, v{vLane}")
    a(f"v_mul_u32_u24 v{vT+3}, {R2ROW}, v{vT+3}")
    a(f"v_and_b32 v{vT+4}, 3, v{vLane}")
    a(f"v_lshl_add_u32 v{vT+3}, v{vT+4}, 4, v{vT+3}")
    SA = K; SB = K + 32; F = V
    MK = 52
    for k in range(8):
        a(f"s_mov_b64 s[{MK+2*k}:{MK+2*k+1}], -1")
    a(f"s_mov_b32 s{sPERM}, 0x0c0c0400")
    if cfg.stamps: a(f"s_mov_b32 s{sSTAMP+5}, 20")
    def loopstamp():
        if cfg.stamps:
            a(f"s_memrealtime s[{sSTAMP}:{sSTAMP+1}]")
            a("s_waitcnt lgkmcnt(0)")
            a(f"s_mov_b32 m0, s{sSTAMP+5}")
            a("s_nop 3")
            a(f"v_writelane_b32 v255, s{sSTAMP}, m0")
            a(f"s_add_u32 s{sSTAMP+5}, s{sSTAMP+5}, 1")
            a(f"s_min_u32 s{sSTAMP+5}, s{sSTAMP+5}, 31")
    def issue(S):
        a(f"s_mov_b32 s{sT3}, s{sT2}")
        for k in range(8):
            a(f"s_mov_b64 exec, s[{MK+2*k}:{MK+2*k+1}]")
            a(f"buffer_load_dwordx4 v[{S+4*k}:{S+4*k+3}], v{vT+3}, s[{SRD_R}:{SRD_R+3}], s{sT3} offen {cfg.ld2}")
            if k < 7:
                a(f"s_add_u32 s{sT3}, s{sT3}, {16*R2ROW}")
        a("s_mov_b64 exec, -1")
    mcount = [0]
    def merge(S):
        mcount[0] += 1
        for k in range(8):
            lbl = f"L_mg{mcount[0]}_{k}"
            a(f"s_cmp_eq_u64 s[{MK+2*k}:{MK+2*k+1}], 0")
            a(f"s_cbranch_scc1 {lbl}")
            a(f"v_perm_b32 v{X}, v{S+4*k+1}, v{S+4*k}, s{sPERM}")
            a(f"v_perm_b32 v{X+1}, v{S+4*k+3}, v{S+4*k+2}, s{sPERM}")
            a(f"v_lshl_or_b32 v{X}, v{X+1}, 16, v{X}")
            a(f"v_cmp_eq_u32 vcc, s{sTAG}, v{X}")
            a(f"s_and_b64 exec, vcc, s[{MK+2*k}:{MK+2*k+1}]")
            a(f"s_andn2_b64 s[{MK+2*k}:{MK+2*k+1}], s[{MK+2*k}:{MK+2*k+1}], vcc")
            for r in range(4):
                a(f"v_and_b32 v{F+4*k+r}, 0xffffff00, v{S+4*k+r}")
            a("s_mov_b64 exec, -1")
            a.label(lbl)
        a(f"s_or_b64 s[{MK+16}:{MK+17}], s[{MK}:{MK+1}], s[{MK+2}:{MK+3}]")
        for k in range(2, 8):
            a(f"s_or_b64 s[{MK+16}:{MK+17}], s[{MK+16}:{MK+17}], s[{MK+2*k}:{MK+2*k+1}]")
    a(f"s_not_b32 s{sT3}, s{sTAG}")
    for k in range(8):
        a(f"v_mov_b32 v{SA+4*k}, s{sT3}")
        a(f"v_mov_b32 v{SB+4*k}, s{sT3}")
    a(f"s_mov_b32 s{sSPIN}, {cfg.spin_max}")
    a("s_barrier")
    issue(SB)
    a.label("L_poll2")
    issue(SA)
    a("s_waitcnt vmcnt(8)")
    loopstamp()
    merge(SB)
    a("s_cbranch_scc0 L_poll2_done")
    if cfg.sleep2: a(f"s_sleep {cfg.sleep2}")
    issue(SB)
    a("s_waitcnt vmcnt(8)")
    loopstamp()
    merge(SA)
    a("s_cbranch_scc0 L_poll2_done")
    if cfg.sleep2: a(f"s_sleep {cfg.sleep2}")
    a(f"s_sub_u32 s{sSPIN}, s{sSPIN}, 1")
    a(f"s_cmp_eq_u32 s{sSPIN}, 0")
    a("s_cbranch_scc0 L_poll2")
    a.label("L_poll2_done")
    if cfg.stamps:
        a(f"s_sub_u32 s{sSTAMP+4}, {cfg.spin_max}, s{sSPIN}")
        a(f"v_writelane_b32 v255, s{sSTAMP+4}, 14")
    stamp(10)
    for st in (16, 8, 4):
        for k in range(st):
            a(f"v_add_f32 v{F+k}, v{F+k}, v{F+st+k}")
    for rot in (4, 8):
        a("s_nop 0")
        for r in range(4):
            a(f"v_add_f32_dpp v{F+r}, v{F+r}, v{F+r} row_ror:{rot} row_mask:0xf bank_mask:0xf")
    for sw in ("v_permlane16_swap_b32", "v_permlane32_swap_b32"):
        for r in range(4):
            a(f"v_mov_b32 v{F+4+r}, v{F+r}")
        a("s_nop 0")
        for r in range(4):
            a(f"{sw} v{F+r}, v{F+4+r}")
        a("s_nop 0")
        for r in range(4):
            a(f"v_add_f32 v{F+r}, v{F+r}, v{F+4+r}")
    a(f"v_cvt_pk_bf16_f32 v{F+8}, v{F}, v{F+1}")
    a(f"v_cvt_pk_bf16_f32 v{F+9}, v{F+2}, v{F+3}")
    a(f"s_mul_i32 s{sT0}, s{sBRT}, 1280")
    a(f"s_lshr_b32 s{sT1}, s{sRB}, 3")
    a(f"s_lshl_b32 s{sT1}, s{sT1}, 8")
    a(f"s_add_u32 s{sT0}, s{sT0}, s{sT1}")
    a(f"s_and_b32 s{sT1}, s{sRB}, 3")
    a(f"s_lshl_b32 s{sT1}, s{sT1}, 6")
    a(f"s_add_u32 s{sT0}, s{sT0}, s{sT1}")
    a(f"s_bfe_u32 s{sT1}, s{sRB}, 0x10002")
    a(f"s_lshl_b32 s{sT1}, s{sT1}, 3")
    a(f"s_add_u32 s{sT0}, s{sT0}, s{sT1}")
    a(f"v_lshlrev_b32 v{vT+4}, 4, v{vLane}")
    a(f"s_mov_b32 s{SRD_OUT}, s36")
    a(f"s_mov_b32 s{SRD_OUT+1}, s37")
    a(f"s_mov_b32 s{SRD_OUT+2}, 2560")
    a(f"s_mov_b32 s{SRD_OUT+3}, 0x20000")
    a("s_mov_b64 exec, 0xf")
    a(f"buffer_store_dwordx2 v[{F+8}:{F+9}], v{vT+4}, s[{SRD_OUT}:{SRD_OUT+3}], s{sT0} offen")
    a("s_cmp_lg_u32 s2, 0")
    a("s_cbranch_scc1 L_fin2")
    a("s_mov_b64 exec, 1")
    a(f"v_mov_b32 v{vT+5}, 0")
    a(f"v_mov_b32 v{vT+6}, s{sTAG}")
    a(f"global_store_dword v{vT+5}, v{vT+6}, s[40:41] {cfg.stE}")
    a.label("L_fin2")
    a("s_mov_b64 exec, -1")
    a.label("L_fin")
    if cfg.stamps:
        stamp(11)
        a(f"s_getreg_b32 s{sT0}, hwreg(HW_REG_HW_ID)")
        a(f"s_getreg_b32 s{sT1}, hwreg(HW_REG_XCC_ID)")
        a(f"v_writelane_b32 v255, s{sT0}, 12")
        a(f"v_writelane_b32 v255, s{sT1}, 13")
        a(f"s_lshl_b32 s{sT0}, s2, 3")
        a(f"s_add_u32 s{sT0}, s{sT0}, s{sW}")
        a(f"s_lshl_b32 s{sT0}, s{sT0}, 7")
        a(f"s_add_u32 s{sT0}, s{sT0}, {WS_STAMP}")
        a(f"v_lshlrev_b32 v{vT}, 2, v{vLane}")
        a(f"v_add_u32 v{vT}, s{sT0}, v{vT}")
        a("s_mov_b32 exec_lo, -1")
        a("s_mov_b32 exec_hi, 0")
        a(f"global_store_dword v{vT}, v255, s[40:41]")
        a(f"v_add_u32 v{vT}, {1<<20}, v{vT}")
        a(f"global_store_dword v{vT}, v254, s[40:41]")
    a.label("L_end")
    a("s_endpgm")
    k = kernel_text(NAME + "_kernel", a.text(), 256, 102)
    open(path, "w").write(file_text([(NAME + "_kernel", 256, 512, LDS_BYTES)], [k]))

if __name__ == "__main__":
    cfg = Cfg()
    if "--stamps" in sys.argv: cfg.stamps = True
    if "--inter2" in sys.argv: cfg.pat = "inter2"
    if "--iwTj" in sys.argv: cfg.pat = "iwTj"
    if "--kp2" in sys.argv: cfg.kpart1 = 2
    if "--nofast" in sys.argv: cfg.fastpath = False
    if "--contig" in sys.argv: cfg.pat = "contig"
    if "--noprio" in sys.argv: cfg.prio = False
    if "--st0plain" in sys.argv: cfg.st0 = ""
    if "--nodbg0" in sys.argv: cfg.dbg0 = False
    for x in sys.argv:
        if x.startswith("--thr="): cfg.thr = int(x[6:])
    if "--warm" in sys.argv: cfg.warm = True
    for x in sys.argv:
        if x.startswith("--sleep2="): cfg.sleep2 = int(x[9:])
    for x in sys.argv:
        if x.startswith("--delay2="): cfg.delay2 = int(x[9:])
    for x in sys.argv:
        if x.startswith("--ld2="): cfg.ld2 = x[6:].replace("_", " ")
        if x.startswith("--st2="): cfg.st2 = x[6:].replace("_", " ")
    for x in sys.argv:
        if x.startswith("--abl="): cfg.abl = x[6:]
    for x in sys.argv:
        if x.startswith("--unthr="): cfg.unthr = int(x[8:])
    if "--nokfirst" in sys.argv: cfg.kfirst = False
    if "--woearly" in sys.argv: cfg.woearly = True
    if "--k0first" in sys.argv: cfg.k0first = True
    if "--yprio" in sys.argv: cfg.yprio = True
    if "--stEsc1" in sys.argv: cfg.stE = "sc1"
    for x in sys.argv:
        if x.startswith("--pad="): cfg.pad = int(x[6:])
    if "--redlow" in sys.argv: cfg.redeven = False
    if "--wo0" in sys.argv: cfg.wopos = 0
    if "--wonothr" in sys.argv: cfg.wothr = False
    if "--nt" in sys.argv: cfg.fq = cfg.fk = cfg.fv = cfg.fo = "nt"
    gen(sys.argv[1], cfg)
```

```python
import sys
from asmgen import *

class Cfg:
    stamps = False
    fq = ""; fk = ""; fv = ""; fo = ""
    spin_max = 400000
    kpart1 = 1
    sleep0 = 1
    sleep1 = 0
    sleep2 = 0
    pat = "iwTj"
    fastpath = True
    pipe2 = True
    prio = True
    dbg0 = False
    thr = 3
    unthr = 3
    woearly = False
    wopos = 16
    wothr = True
    kfirst = False
    nodummy = True
    codepf = 0
    redeven = True
    stE = ''
    pad = 0
    yprio = False
    k0first = False
    fb_rounds = 16
    abl = ''
    ld2 = 'sc1'
    st2 = 'sc1'
    delay2 = 0
    dbgm = False
    warm = False
    qw = 7
    st0 = 'sc1'

sW = 3; sH = 4; sJ = 5
sT0, sT1, sT2, sT3 = 6, 7, 8, 9
sTAG = 10; sSPIN = 11; sRB = 12; sBRT = 13
sMA = 14; sLA = 15
sMB = 42; sLB = 43
SRD_X = 44; SRD_WQ = 48; SRD_KA = 52; SRD_VA = 56; SRD_KB = 60; SRD_VB = 64
SRD_WO = 44
SRD_R = 48
SRD_OUT = 68
sOFF = 72
sMASK = 76
sPERM = 84
sSAME = 85
sRED = 92
sQG = 93
sC = 90
sPROJ = 91
sP0 = 87
sP1 = 88
sP2 = 89
sXCC = 86
sSTAMP = 96

vLane = 0
vLin = 1; vKoff = 2; vWq = 3; vWo = 4
vMask = 5
vT = 9
vS = 10; vN = 11
K = 16; V = 96; Q = 176; C = 208; X = 228

LDS_QPART = 0
LDS_QHL = 4096; QHL_STRIDE = 288
LDS_ML = 5248
LDS_OPART = 5632
LDS_OHL = 13824
LDS_CNT = 14336
LDS_BYTES = 16384
WS_R0 = 4096
WS_R0S = 0x44000
WS_R1 = 0x90000
WS_R2 = 0x120000
R2ROW = 2560
WS_REC_BYTES = WS_R2 + 2*128*R2ROW
WS_STAMP = 4 << 20

def gen(path, cfg):
    a = Asm()
    def stamp(idx):
        if cfg.stamps:
            a(f"s_memrealtime s[{sSTAMP}:{sSTAMP+1}]")
            a("s_waitcnt lgkmcnt(0)")
            a(f"v_writelane_b32 v255, s{sSTAMP}, {idx}")
    def soff(T):
        return "0" if T == 0 else f"s{sOFF+T-1}"
    def ands(dst, src, bc):
        for k in range(4):
            a(f"v_and_b32_dpp v{dst+k}, v{src}, v{vMask+k} row_newbcast:{bc} row_mask:0xf bank_mask:0xf")
    def kvloads(reg, srdA, srdB, voff, T0, T1, fl):
        for T in range(T0, T1):
            for i in range(4):
                r = reg + 16*T + 4*i
                if T < 4:
                    a(f"buffer_load_dwordx4 v[{r}:{r+3}], v{voff}, s[{srdA}:{srdA+3}], {soff(T)} offen offset:{1024*i} {fl}")
                else:
                    a(f"buffer_load_dwordx4 v[{r}:{r+3}], v{voff}, s[{srdB}:{srdB+3}], 0 offen offset:{1024*i} {fl}")

    a("s_cmp_ge_u32 s2, 256")
    a("s_cbranch_scc1 L_end")
    if cfg.stamps:
        a(f"s_memrealtime s[{sSTAMP+2}:{sSTAMP+3}]")
    a("s_load_dwordx16 s[16:31], s[0:1], 0")
    for _ in range(cfg.pad): a("s_nop 0")
    a("s_load_dwordx4 s[32:35], s[0:1], 64")
    a("s_load_dwordx4 s[36:39], s[0:1], 80")
    a("s_load_dwordx2 s[40:41], s[0:1], 96")
    a(f"v_lshrrev_b32 v{vT}, 6, v0")
    a(f"v_and_b32 v{vLane}, 63, v0")
    a(f"v_readfirstlane_b32 s{sW}, v{vT}")
    a(f"s_and_b32 s{sH}, s2, 7")
    a(f"s_lshr_b32 s{sJ}, s2, 3")
    a(f"s_and_b32 s{sT0}, s{sJ}, 24")
    a(f"s_add_u32 s{sH}, s{sH}, s{sT0}")
    a(f"s_and_b32 s{sJ}, s{sJ}, 7")
    a(f"v_lshrrev_b32 v{vS}, 4, v{vLane}")
    a(f"v_and_b32 v{vN}, 15, v{vLane}")
    a(f"v_lshlrev_b32 v{vT+3}, 4, v{vN}")
    a(f"v_lshl_add_u32 v{vWq}, v{vS}, 13, v{vT+3}")
    a(f"v_lshlrev_b32 v{vT+4}, 3, v{vN}")
    a(f"v_lshl_add_u32 v{vT+4}, v{vS}, 1, v{vT+4}")
    a(f"v_lshrrev_b32 v{vT+5}, 2, v{vN}")
    a(f"v_and_b32 v{vT+6}, 3, v{vN}")
    a(f"v_lshlrev_b32 v{vKoff}, 8, v{vT+5}")
    a(f"v_lshl_add_u32 v{vKoff}, v{vS}, 6, v{vKoff}")
    a(f"v_lshl_add_u32 v{vKoff}, v{vT+6}, 4, v{vKoff}")
    a(f"s_and_b32 s{sRB}, s{sJ}, 3")
    a(f"s_lshr_b32 s{sBRT}, s{sJ}, 2")
    a(f"s_mul_i32 s{sT0}, s{sRB}, 160")
    a(f"s_mul_i32 s{sT1}, s{sW}, 20")
    a(f"s_add_u32 s{sT0}, s{sT0}, s{sT1}")
    a(f"s_lshl_b32 s{sT1}, s{sT0}, 13")
    a(f"s_lshl_b32 s{sT2}, s{sH}, 8")
    a(f"s_add_u32 s{sT1}, s{sT1}, s{sT2}")
    a(f"s_lshl_b32 s{sT2}, s{sT0}, 1")
    a(f"s_lshl_b32 s{sT0}, s{sH}, 20")
    a(f"s_lshl_b32 s{sP0}, s{sJ}, 17")
    a(f"s_lshl_b32 s{sT3}, s{sW}, 12")
    a(f"s_add_u32 s{sP0}, s{sP0}, s{sT3}")
    a(f"s_add_u32 s{sP0}, s{sP0}, s{sT0}")
    a(f"s_lshl_b32 s{sP1}, s{sW}, 3")
    a(f"s_add_u32 s{sP1}, s{sP1}, s{sJ}")
    a(f"s_lshl_b32 s{sP1}, s{sP1}, 12")
    a(f"s_add_u32 s{sP1}, s{sP1}, s{sT0}")
    a(f"s_add_u32 s{sP1}, s{sP1}, 786432")
    tstride = 32768
    asz = 3*tstride + 4096
    for t in range(1, 4):
        a(f"s_mov_b32 s{sOFF+t-1}, {tstride*t}")
    a(f"s_mov_b32 s{sP2}, {4*32768}")
    a(f"s_mov_b32 s{SRD_WQ+2}, {19*8192 + 256}")
    a(f"s_mov_b32 s{SRD_WQ+3}, 0x20000")
    a(f"s_sub_u32 s{SRD_X+2}, 1280, s{sT2}")
    a(f"s_mov_b32 s{SRD_X+3}, 0x20000")
    a(f"s_mov_b32 s{SRD_KA+2}, {asz}")
    a(f"s_mov_b32 s{SRD_KA+3}, 0x20000")
    a(f"s_cmp_eq_u32 s{sBRT}, 1")
    a("s_waitcnt lgkmcnt(0)")
    if cfg.stamps:
        a("v_mov_b32 v255, 0")
        a(f"v_writelane_b32 v255, s{sSTAMP+2}, 0")
    a("s_cselect_b64 s[16:17], s[26:27], s[16:17]")
    a("s_cselect_b64 s[22:23], s[32:33], s[22:23]")
    a("s_cselect_b64 s[24:25], s[34:35], s[24:25]")
    a(f"s_add_u32 s{SRD_X}, s16, s{sT2}")
    a(f"s_addc_u32 s{SRD_X+1}, s17, 0")
    a(f"s_add_u32 s{SRD_WQ}, s22, s{sT1}")
    a(f"s_addc_u32 s{SRD_WQ+1}, s23, 0")
    XR0 = X
    WQ = Q
    a(f"buffer_load_ushort v{XR0}, v{vT+4}, s[{SRD_X}:{SRD_X+3}], 0 offen")
    for t in range(5):
        so = "0" if t == 0 else (f"s{sOFF+t-1}" if t < 4 else f"s{sP2}")
        a(f"buffer_load_dwordx4 v[{WQ+4*t}:{WQ+4*t+3}], v{vWq}, s[{SRD_WQ}:{SRD_WQ+3}], {so} offen {cfg.fq}")
    a(f"s_add_u32 s{SRD_KA}, s18, s{sP0}")
    a(f"s_addc_u32 s{SRD_KA+1}, s19, 0")
    KP = cfg.kpart1
    if cfg.k0first:
        kvloads(K, SRD_KA, SRD_KB, vKoff, 0, KP, cfg.fk)
        stamp(1)
    if cfg.codepf:
        a(f"s_cmp_lg_u32 s{sW}, 3")
        a("s_cbranch_scc1 L_nopf")
        a("s_getpc_b64 s[94:95]")
        a(f"v_lshlrev_b32 v{vT}, 7, v{vLane}")
        a(f"global_load_dword v{X+20}, v{vT}, s[94:95]")
        if cfg.codepf > 1:
            a(f"v_add_u32 v{vT}, 8192, v{vT}")
            a("s_mov_b64 exec, 0xf")
            a(f"global_load_dword v{X+21}, v{vT}, s[94:95]")
            a("s_mov_b64 exec, -1")
        a.label("L_nopf")
    a(f"s_cmp_lg_u32 s{sW}, 0")
    a("s_cbranch_scc1 L_noinit")
    for k in range(4):
        a(f"v_mov_b32 v{X+4+k}, 0")
    a(f"v_mul_u32_u24 v{vT}, {QHL_STRIDE}, v{vLane}")
    a(f"v_mov_b32 v{vT+5}, 0")
    a("s_mov_b64 exec, 0xf")
    a(f"ds_write_b128 v{vT}, v[{X+4}:{X+7}] offset:{LDS_QHL+256}")
    a(f"ds_write_b128 v{vT+5}, v[{X+4}:{X+7}] offset:{LDS_CNT}")
    a(f"ds_write_b128 v{vT+5}, v[{X+4}:{X+7}] offset:{LDS_CNT+16}")
    a("s_mov_b64 exec, -1")
    a("s_waitcnt lgkmcnt(0)")
    a.label("L_noinit")
    a("s_barrier")
    if not cfg.k0first:
        kvloads(K, SRD_KA, SRD_KB, vKoff, 0, KP, cfg.fk)
        stamp(1)
    a(f"s_load_dword s{sTAG}, s[40:41], 0")
    a(f"s_getreg_b32 s{sXCC}, hwreg(HW_REG_XCC_ID)")
    if cfg.redeven:
        a(f"s_and_b32 s{sT0}, s2, 7")
        a(f"s_lshr_b32 s{sT1}, s2, 3")
        a(f"s_lshr_b32 s{sQG}, s{sT0}, 1")
        a(f"s_mul_i32 s{sQG}, s{sQG}, 20")
        a(f"s_add_u32 s{sQG}, s{sQG}, s{sT1}")
        a(f"s_cmp_lt_u32 s{sT1}, 20")
        a(f"s_cselect_b32 s{sRED}, 1, 0")
        a(f"s_bitcmp1_b32 s2, 0")
        a(f"s_cselect_b32 s{sRED}, 0, s{sRED}")
    else:
        a(f"s_and_b32 s{sQG}, s2, 7")
        a(f"s_mul_i32 s{sQG}, s{sQG}, 10")
        a(f"s_lshr_b32 s{sT1}, s2, 3")
        a(f"s_add_u32 s{sQG}, s{sQG}, s{sT1}")
        a("s_cmp_lt_u32 s2, 80")
        a(f"s_cselect_b32 s{sRED}, 1, 0")
    a(f"s_cmp_eq_u32 s{sW}, 7")
    a(f"s_cselect_b32 s{sC}, 4, s{sW}")
    a(f"s_cselect_b32 s{sPROJ}, 1, 0")
    a(f"s_cmp_lt_u32 s{sW}, 4")
    a(f"s_cselect_b32 s{sPROJ}, 1, s{sPROJ}")
    for srd, p, off, sz in ((SRD_VA, 20, sP0, asz), (SRD_KB, 28, sP1, 4096), (SRD_VB, 30, sP1, 4096)):
        a(f"s_add_u32 s{srd}, s{p}, s{off}")
        a(f"s_addc_u32 s{srd+1}, s{p+1}, 0")
        a(f"s_mov_b32 s{srd+2}, {sz}")
        a(f"s_mov_b32 s{srd+3}, 0x20000")
    a(f"v_lshlrev_b32 v{vLin}, 4, v{vLane}")
    a(f"v_mul_u32_u24 v{vWo}, 1280, v{vS}")
    a(f"v_add_u32 v{vWo}, v{vWo}, v{vT+3}")
    vQA = X + 23
    a(f"v_lshlrev_b32 v{vT+3}, 6, v{vS}")
    a(f"v_lshl_add_u32 v{vT+3}, v{vT+6}, 4, v{vT+3}")
    a(f"v_mov_b32 v{vT+4}, 256")
    for i in range(4):
        pat = 0x000f000f << (4*i)
        a(f"s_mov_b32 s{sMASK+2*i}, 0x{pat:08x}")
        a(f"s_mov_b32 s{sMASK+2*i+1}, 0x{pat:08x}")
    for i in range(4):
        a(f"v_cndmask_b32_e64 v{vQA+i}, v{vT+4}, v{vT+3}, s[{sMASK+2*i}:{sMASK+2*i+1}]")
    a(f"v_and_b32 v{vT+5}, 1, v{vLane}")
    a(f"v_lshlrev_b32 v{vT+5}, 4, v{vT+5}")
    a(f"v_mov_b32 v{vT+6}, 0xffff")
    a(f"v_lshlrev_b32 v{vT+5}, v{vT+5}, v{vT+6}")
    for k, pat in enumerate((0x03030303, 0x0c0c0c0c, 0x30303030, 0xc0c0c0c0)):
        a(f"s_mov_b32 s{sMASK+2*k}, 0x{pat:08x}")
        a(f"s_mov_b32 s{sMASK+2*k+1}, 0x{pat:08x}")
    for k in range(4):
        a(f"v_cndmask_b32_e64 v{vMask+k}, 0, v{vT+5}, s[{sMASK+2*k}:{sMASK+2*k+1}]")
    AOP = [C, C + 4]; QC = C + 8
    a(f"s_waitcnt vmcnt({5+4*KP})")
    a(f"v_lshl_or_b32 v{XR0}, v{XR0}, 16, v{XR0}")
    a("s_nop 1")
    ands(AOP[0], XR0, 0)
    for t in range(5):
        if t + 1 < 5:
            ands(AOP[(t+1) % 2], XR0, t+1)
        else:
            a("s_nop 1")
        a(f"s_waitcnt vmcnt({4*KP + 4 - t})")
        c = "0" if t == 0 else f"v[{QC}:{QC+3}]"
        a(f"v_mfma_f32_16x16x32_bf16 v[{QC}:{QC+3}], v[{AOP[t%2]}:{AOP[t%2]+3}], v[{WQ+4*t}:{WQ+4*t+3}], {c}")
    vPA = X + 22
    a(f"v_lshlrev_b32 v{vPA}, 5, v{vN}")
    a(f"v_lshl_add_u32 v{vPA}, v{vS}, 4, v{vPA}")
    a(f"s_lshl_b32 s{sT0}, s{sW}, 9")
    a(f"v_add_u32 v{vPA}, s{sT0}, v{vPA}")
    a(f"s_mov_b32 s{SRD_R}, s40")
    a(f"s_mov_b32 s{SRD_R+1}, s41")
    a(f"s_mov_b32 s{SRD_R+2}, {WS_REC_BYTES}")
    a(f"s_mov_b32 s{SRD_R+3}, 0x20000")
    a(f"v_mov_b32 v{vT+5}, 0")
    a(f"v_mov_b32 v{vT+6}, 1")
    a("s_mov_b32 exec_hi, 0")
    a("s_nop 0")
    a(f"ds_write_b128 v{vPA}, v[{QC}:{QC+3}] offset:{LDS_QPART}")
    a("s_mov_b64 exec, 1")
    a(f"ds_add_u32 v{vT+5}, v{vT+6} offset:{LDS_CNT}")
    a("s_mov_b64 exec, -1")
    a("s_waitcnt lgkmcnt(0)")
    a(f"s_add_u32 s{sTAG}, s{sTAG}, 1")
    stamp(2)
    a(f"s_cmp_lg_u32 s{sW}, {cfg.qw}")
    a("s_cbranch_scc1 L_bulk")
    if cfg.prio: a("s_setprio 3")
    if cfg.kfirst:
        kvloads(K, SRD_KA, SRD_KB, vKoff, KP, 5, cfg.fk)
    a.label("L_cntq")
    a(f"ds_read_b32 v{vT+6}, v{vT+5} offset:{LDS_CNT}")
    a("s_waitcnt lgkmcnt(0)")
    a(f"v_cmp_ne_u32 vcc, 8, v{vT+6}")
    a("s_cbranch_vccz L_cntq_done")
    a("s_sleep 1")
    a("s_branch L_cntq")
    a.label("L_cntq_done")
    QS = C
    a(f"v_lshlrev_b32 v{vT+3}, 3, v{vLane}")
    for w in range(8):
        a(f"ds_read_b64 v[{QS+2*w}:{QS+2*w+1}], v{vT+3} offset:{LDS_QPART+512*w}")
    a("s_waitcnt lgkmcnt(0)")
    for st in (8, 4, 2):
        for k in range(0, st, 2):
            a(f"v_add_f32 v{QS+k}, v{QS+k}, v{QS+st+k}")
            a(f"v_add_f32 v{QS+k+1}, v{QS+k+1}, v{QS+st+k+1}")
    G = X + 4
    a(f"v_mov_b32 v{G}, v{QS}")
    a(f"v_mov_b32 v{G+1}, v{QS+1}")
    a(f"v_mov_b32 v{G+2}, s{sXCC}")
    a(f"v_mov_b32 v{G+3}, s{sTAG}")
    a(f"s_lshl_b32 s{sT0}, s{sH}, 13")
    a(f"s_add_u32 s{sT0}, s{sT0}, {WS_R0}")
    a(f"s_lshl_b32 s{sT1}, s{sJ}, 10")
    a(f"s_add_u32 s{sT1}, s{sT1}, s{sT0}")
    stamp(16)
    if 'x' in cfg.abl:
        a("s_branch L_abl_flag")
    a(f"buffer_store_dwordx4 v[{G}:{G+3}], v{vLin}, s[{SRD_R}:{SRD_R+3}], s{sT1} offen")
    a(f"s_add_u32 s{sP0}, s{sT1}, {WS_R0S - WS_R0}")
    a(f"s_mov_b32 s{sP1}, 0")
    F = Q
    a(f"s_xor_b32 s{sT3}, s{sTAG}, 1")
    for k in range(8):
        a(f"v_mov_b32 v{F+4*k+3}, s{sT3}")
    a(f"s_mov_b32 s{sSPIN}, 0")
    a.label("L_poll0")
    a(f"s_mov_b32 s{sT3}, s{sT0}")
    a(f"s_cmp_lt_u32 s{sSPIN}, {cfg.fb_rounds}")
    a("s_cbranch_scc1 L_p0go")
    a(f"s_cmp_eq_u32 s{sP1}, 1")
    a("s_cbranch_scc1 L_p0alt")
    a(f"buffer_store_dwordx4 v[{G}:{G+3}], v{vLin}, s[{SRD_R}:{SRD_R+3}], s{sP0} offen sc1")
    a(f"s_mov_b32 s{sP1}, 1")
    a.label("L_p0alt")
    a(f"s_bitcmp1_b32 s{sSPIN}, 0")
    a("s_cbranch_scc0 L_p0go")
    a(f"s_add_u32 s{sT3}, s{sT3}, {WS_R0S - WS_R0}")
    a.label("L_p0go")
    for k in range(8):
        a(f"v_cmp_ne_u32 vcc, s{sTAG}, v{F+4*k+3}")
        a("s_mov_b64 exec, vcc")
        a(f"s_cbranch_execz L_p0skip{k}")
        a(f"buffer_load_dwordx4 v[{F+4*k}:{F+4*k+3}], v{vLin}, s[{SRD_R}:{SRD_R+3}], s{sT3} offen sc1")
        a.label(f"L_p0skip{k}")
        a("s_mov_b64 exec, -1")
        if k < 7:
            a(f"s_add_u32 s{sT3}, s{sT3}, 1024")
    a("s_waitcnt vmcnt(0)")
    a(f"v_xor_b32 v{vT+6}, s{sTAG}, v{F+3}")
    for k in range(1, 8):
        a(f"v_xor_b32 v{vT+4}, s{sTAG}, v{F+4*k+3}")
        a(f"v_or_b32 v{vT+6}, v{vT+6}, v{vT+4}")
    a(f"v_cmp_ne_u32 vcc, 0, v{vT+6}")
    a("s_cbranch_vccz L_poll0_done")
    a(f"s_add_u32 s{sSPIN}, s{sSPIN}, 1")
    a(f"s_cmp_lt_u32 s{sSPIN}, {cfg.spin_max}")
    a("s_cbranch_scc1 L_poll0")
    a.label("L_poll0_done")
    stamp(18)
    if cfg.stamps:
        a(f"v_writelane_b32 v255, s{sSPIN}, 14")
    a(f"v_xor_b32 v{vT+6}, s{sXCC}, v{F+2}")
    for k in range(1, 8):
        a(f"v_xor_b32 v{vT+4}, s{sXCC}, v{F+4*k+2}")
        a(f"v_or_b32 v{vT+6}, v{vT+6}, v{vT+4}")
    a(f"v_cmp_ne_u32 vcc, 0, v{vT+6}")
    a(f"s_cmp_eq_u64 vcc, 0")
    a(f"s_cselect_b32 s{sSAME}, 1, 0")
    a(f"s_or_b32 s{sT3}, s{sSAME}, s{sP1}")
    a(f"s_cmp_eq_u32 s{sT3}, 0")
    a("s_cbranch_scc0 L_p0noslow")
    a(f"buffer_store_dwordx4 v[{G}:{G+3}], v{vLin}, s[{SRD_R}:{SRD_R+3}], s{sP0} offen sc1")
    a.label("L_p0noslow")
    a(f"s_mov_b32 s{sT0}, 0x3e0293ee")
    a(f"s_mov_b32 s{sPERM}, 0x07060302")
    a(f"v_lshlrev_b32 v{vT+3}, 2, v{vLane}")
    for br in range(2):
        f = F + 16*br
        for e in (0, 1):
            a(f"v_add_f32 v{f+e}, v{f+e}, v{f+4+e}")
            a(f"v_add_f32 v{f+8+e}, v{f+8+e}, v{f+12+e}")
        for e in (0, 1):
            a(f"v_add_f32 v{f+e}, v{f+e}, v{f+8+e}")
        for e in (0, 1):
            a(f"v_mul_f32 v{f+e}, s{sT0}, v{f+e}")
        a(f"v_perm_b32 v{f+4}, v{f+1}, v{f}, s{sPERM}")
        a(f"v_and_b32 v{f+5}, 0xffff0000, v{f}")
        a(f"v_and_b32 v{f+6}, 0xffff0000, v{f+1}")
        a(f"v_sub_f32 v{f+5}, v{f}, v{f+5}")
        a(f"v_sub_f32 v{f+6}, v{f+1}, v{f+6}")
        a(f"v_cvt_pk_bf16_f32 v{f+5}, v{f+5}, v{f+6}")
        a(f"ds_write_b32 v{vT+3}, v{f+4} offset:{LDS_QHL + (2*br)*QHL_STRIDE}")
        a(f"ds_write_b32 v{vT+3}, v{f+5} offset:{LDS_QHL + (2*br+1)*QHL_STRIDE}")
    a.label("L_abl_flag")
    a(f"v_mov_b32 v{vT+5}, 1")
    a(f"v_mov_b32 v{vT+6}, s{sSAME}")
    a(f"v_mov_b32 v{vT+4}, 0")
    a("s_mov_b64 exec, 1")
    a(f"ds_write_b64 v{vT+4}, v[{vT+5}:{vT+6}] offset:{LDS_CNT+8}")
    a("s_mov_b64 exec, -1")
    if cfg.kfirst:
        if cfg.prio: a("s_setprio 0")
        a("s_branch L_afterK")
    a.label("L_bulk")
    if cfg.prio: a("s_setprio 0")
    def thr():
        a(f"s_waitcnt vmcnt({cfg.thr})")
    a(f"s_cmp_eq_u32 s{sW}, {cfg.qw}")
    for T in range(KP, 5):
        a(f"s_cbranch_scc1 L_nothr{T}")
        thr()
        a.label(f"L_nothr{T}")
        kvloads(K, SRD_KA, SRD_KB, vKoff, T, T + 1, cfg.fk)
    a.label("L_afterK")
    if cfg.yprio:
        a(f"s_cmp_ge_u32 s{sW}, 4")
        a("s_cbranch_scc0 L_noyp")
        a("s_setprio 1")
        a.label("L_noyp")
    stamp(3)
    thr()
    kvloads(V, SRD_VA, SRD_VB, vLin, 0, 1, cfg.fv)
    a(f"v_mov_b32 v{vT+4}, 0")
    a.label("L_flagq")
    a(f"ds_read_b64 v[{vT+5}:{vT+6}], v{vT+4} offset:{LDS_CNT+8}")
    a("s_waitcnt lgkmcnt(0)")
    a(f"v_cmp_ne_u32 vcc, 1, v{vT+5}")
    a("s_cbranch_vccz L_flagq_done")
    a("s_sleep 2")
    a("s_branch L_flagq")
    a.label("L_flagq_done")
    a(f"v_readfirstlane_b32 s{sSAME}, v{vT+6}")
    stamp(4)
    def consts(br):
        for i in range(4):
            a(f"ds_read_b128 v[{Q+8*i}:{Q+8*i+3}], v{vQA+i} offset:{LDS_QHL + (2*br)*QHL_STRIDE}")
            a(f"ds_read_b128 v[{Q+8*i+4}:{Q+8*i+7}], v{vQA+i} offset:{LDS_QHL + (2*br+1)*QHL_STRIDE}")
    def qk(T):
        c = C + 4*T
        for i in range(4):
            r = K + 16*T + 4*i
            cin = "0" if i == 0 else f"v[{c}:{c+3}]"
            if 'q' in cfg.abl: continue
            a(f"v_mfma_f32_16x16x32_bf16 v[{c}:{c+3}], v[{r}:{r+3}], v[{Q+8*i}:{Q+8*i+3}], {cin}")
            a(f"v_mfma_f32_16x16x32_bf16 v[{c}:{c+3}], v[{r}:{r+3}], v[{Q+8*i+4}:{Q+8*i+7}], v[{c}:{c+3}]")
    a(f"s_lshl_b32 s{sT1}, s{sH}, 7")
    a(f"s_lshl_b32 s{sT2}, s{sRB}, 5")
    a(f"s_add_u32 s{sT1}, s{sT1}, s{sT2}")
    a(f"s_mul_i32 s{sT1}, s{sT1}, 1280")
    a(f"s_lshl_b32 s{sT0}, s{sC}, 8")
    a(f"s_add_u32 s{sT0}, s{sT0}, s{sT1}")
    a(f"s_add_u32 s{SRD_WO}, s24, s{sT0}")
    a(f"s_addc_u32 s{SRD_WO+1}, s25, 0")
    a(f"s_cmp_eq_u32 s{sPROJ}, 1")
    a(f"s_cselect_b32 s{SRD_WO+2}, {31*1280 + 256}, 0")
    a(f"s_mov_b32 s{SRD_WO+3}, 0x20000")
    WO = K
    def woloads(t0, t1):
        for t in range(t0, t1):
            r = WO + 4*t
            so = "0"
            if t > 0:
                a(f"s_movk_i32 s{sT1}, {5120*t}" if 5120*t < 32768 else f"s_mov_b32 s{sT1}, {5120*t}")
                so = f"s{sT1}"
            a(f"buffer_load_dwordx4 v[{r}:{r+3}], v{vWo}, s[{SRD_WO}:{SRD_WO+3}], {so} offen {cfg.fo}")
    consts(0)
    a("s_waitcnt vmcnt(8) lgkmcnt(0)")
    for T in range(4):
        qk(T)
        if T == 3:
            consts(1)
        if T + 1 < cfg.unthr: thr()
        kvloads(V, SRD_VA, SRD_VB, vLin, T + 1, T + 2, cfg.fv)
    if cfg.woearly:
        woloads(0, 8)
        stamp(5)
        a(f"s_waitcnt vmcnt(24) lgkmcnt(0)")
    else:
        a(f"s_waitcnt vmcnt(16) lgkmcnt(0)")
    qk(4)
    a(f"s_mov_b32 s{sMASK}, 0xaaaaaaaa"); a(f"s_mov_b32 s{sMASK+1}, 0xaaaaaaaa")
    a(f"s_mov_b32 s{sMASK+2}, 0xcccccccc"); a(f"s_mov_b32 s{sMASK+3}, 0xcccccccc")
    T0 = X; T1 = X + 5; SC = X + 10; PK = X + 15; MX = X + 20
    for T in range(5):
        c = C + 4*T
        a(f"v_cndmask_b32_e64 v{T0+T}, v{c}, v{c+1}, s[{sMASK}:{sMASK+1}]")
        a(f"v_cndmask_b32_e64 v{T1+T}, v{c+2}, v{c+3}, s[{sMASK}:{sMASK+1}]")
    for T in range(5):
        a(f"v_cndmask_b32_e64 v{SC+T}, v{T0+T}, v{T1+T}, s[{sMASK+2}:{sMASK+3}]")
    for T in range(5):
        a(f"v_add_f32_dpp v{SC+T}, v{SC+T}, v{SC+T} quad_perm:[1,0,3,2] row_mask:0xf bank_mask:0xf")
    for T in range(5):
        a(f"v_add_f32_dpp v{SC+T}, v{SC+T}, v{SC+T} quad_perm:[2,3,0,1] row_mask:0xf bank_mask:0xf")
    a(f"v_max3_f32 v{MX}, v{SC}, v{SC+1}, v{SC+2}")
    a(f"v_mov_b32 v{MX+1}, v{SC+4}")
    a(f"v_max_f32 v{MX}, v{MX}, v{SC+3}")
    def wave_reduce2(op, r0, r1, s0, s1):
        for mod in ("row_ror:4 row_mask:0xf", "row_ror:8 row_mask:0xf", "row_bcast:15 row_mask:0xa", "row_bcast:31 row_mask:0xc"):
            a("s_nop 0")
            a(f"{op}_dpp v{r1}, v{r1}, v{r1} {mod} bank_mask:0xf")
            a(f"{op}_dpp v{r0}, v{r0}, v{r0} {mod} bank_mask:0xf")
        a(f"v_readlane_b32 s{s1}, v{r1}, 63")
        a(f"v_readlane_b32 s{s0}, v{r0}, 63")
        a("s_nop 1")
    a("s_nop 0")
    wave_reduce2("v_max_f32", MX, MX + 1, sMA, sMB)
    for T in range(5):
        a(f"v_subrev_f32 v{SC+T}, s{sMA if T < 4 else sMB}, v{SC+T}")
    for T in range(5):
        a(f"v_exp_f32 v{SC+T}, v{SC+T}")
    a("s_nop 0")
    for T in range(5):
        a(f"v_cvt_pk_bf16_f32 v{PK+T}, v{SC+T}, v{SC+T}")
    for T in range(5):
        a(f"v_and_b32 v{SC+T}, 0xffff0000, v{PK+T}")
    a(f"v_add_f32 v{SC}, v{SC}, v{SC+1}")
    a(f"v_add_f32 v{SC+2}, v{SC+2}, v{SC+3}")
    a(f"v_add_f32 v{SC}, v{SC}, v{SC+2}")
    a("s_nop 0")
    wave_reduce2("v_add_f32", SC, SC + 4, sLA, sLB)
    a(f"s_lshl_b32 s{sT0}, s{sW}, 3")
    a(f"v_mov_b32 v{vT+6}, s{sT0}")
    a(f"v_mov_b32 v{X}, s{sMA}")
    a(f"v_mov_b32 v{X+1}, s{sLA}")
    a(f"v_mov_b32 v{X+2}, s{sMB}")
    a(f"v_mov_b32 v{X+3}, s{sLB}")
    a(f"v_mov_b32 v{vT+4}, 0")
    a(f"v_mov_b32 v{vT+5}, 1")
    a("s_mov_b64 exec, 1")
    a(f"ds_write_b64 v{vT+6}, v[{X}:{X+1}] offset:{LDS_ML}")
    a(f"ds_write_b64 v{vT+6}, v[{X+2}:{X+3}] offset:{LDS_ML+64}")
    a(f"ds_add_u32 v{vT+4}, v{vT+5} offset:{LDS_CNT+4}")
    a("s_mov_b64 exec, -1")
    AO = [Q, Q + 4]; OCA = Q + 8; OCB = Q + 12
    sWG = 52
    LSE = X + 8
    def early_weights():
        a(f"s_cmp_lt_u32 s{sW}, 5")
        a("s_cbranch_scc1 L_noew")
        a(f"s_cmp_eq_u32 s{sW}, 7")
        a("s_cbranch_scc1 L_noew")
        a(f"v_mov_b32 v{vT+4}, 0")
        a.label("L_cntml")
        a(f"ds_read_b32 v{vT+5}, v{vT+4} offset:{LDS_CNT+4}")
        a("s_waitcnt lgkmcnt(0)")
        a(f"v_cmp_ne_u32 vcc, 8, v{vT+5}")
        a("s_cbranch_vccz L_cntml_done")
        a("s_sleep 1")
        a("s_branch L_cntml")
        a.label("L_cntml_done")
        a(f"s_sub_u32 s{sT2}, s{sW}, 5")
        a(f"s_lshl_b32 s{sT0}, s{sT2}, 6")
        a(f"v_and_b32 v{vT+4}, 7, v{vLane}")
        a(f"v_lshlrev_b32 v{vT+4}, 3, v{vT+4}")
        a(f"v_add_u32 v{vT+4}, s{sT0}, v{vT+4}")
        EM = X + 4; EL = X + 5; ET = X + 6; EU = X + 7
        a(f"ds_read_b64 v[{EM}:{EL}], v{vT+4} offset:{LDS_ML}")
        a("s_waitcnt lgkmcnt(0)")
        a(f"v_mov_b32 v{ET}, v{EM}")
        for mod in ("quad_perm:[1,0,3,2]", "quad_perm:[2,3,0,1]", "row_half_mirror"):
            a("s_nop 1")
            a(f"v_max_f32_dpp v{ET}, v{ET}, v{ET} {mod} row_mask:0xf bank_mask:0xf")
        a(f"v_sub_f32 v{EM}, v{EM}, v{ET}")
        a(f"v_exp_f32 v{EM}, v{EM}")
        a("s_nop 0")
        a(f"v_mul_f32 v{EU}, v{EM}, v{EL}")
        for mod in ("quad_perm:[1,0,3,2]", "quad_perm:[2,3,0,1]", "row_half_mirror"):
            a("s_nop 1")
            a(f"v_add_f32_dpp v{EU}, v{EU}, v{EU} {mod} row_mask:0xf bank_mask:0xf")
        a(f"v_rcp_f32 v{EL}, v{EU}")
        a(f"v_log_f32 v{LSE}, v{EU}")
        a("s_nop 0")
        a(f"v_mul_f32 v{EM}, v{EM}, v{EL}")
        a(f"v_add_f32 v{LSE}, v{LSE}, v{ET}")
        a("s_nop 0")
        for w in range(8):
            a(f"v_readlane_b32 s{sWG+w}, v{EM}, {w}")
        a.label("L_noew")
    steps = [(T, t) for T in range(5) for t in range(4)]
    ands(AO[0], PK + 0, 0)
    for idx, (T, t) in enumerate(steps):
        if idx + 1 < len(steps):
            T2, t2 = steps[idx+1]
            ands(AO[(idx+1) % 2], PK + T2, 4*t2)
        else:
            a("s_nop 1")
        if idx == 0:
            if cfg.wopos == 0 and not cfg.woearly:
                woloads(0, 8)
                stamp(5)
            a(f"s_waitcnt vmcnt({12 if (cfg.woearly or cfg.wopos == 0) else 4})")
        if idx == 16:
            if not cfg.woearly and cfg.wopos == 16 and not cfg.wothr:
                woloads(0, 8)
                stamp(5)
            early_weights()
            if not cfg.woearly and cfg.wopos == 16 and cfg.wothr and cfg.nodummy:
                a(f"s_cmp_eq_u32 s{sPROJ}, 0")
                a("s_cbranch_scc1 L_nowo")
                thr()
                woloads(0, 8)
                a("s_waitcnt vmcnt(8)")
                a("s_branch L_wodone")
                a.label("L_nowo")
                a("s_waitcnt vmcnt(0)")
                a.label("L_wodone")
                stamp(5)
            else:
                if not cfg.woearly and cfg.wopos == 16 and cfg.wothr:
                    thr()
                    woloads(0, 8)
                    stamp(5)
                a("s_waitcnt vmcnt(8)")
        r = V + 16*T + 4*t
        oc = OCA if T < 4 else OCB
        c = "0" if idx in (0, 16) else f"v[{oc}:{oc+3}]"
        a(f"v_mfma_f32_16x16x32_bf16 v[{oc}:{oc+3}], v[{AO[idx%2]}:{AO[idx%2]+3}], v[{r}:{r+3}], {c}")
    a("s_mov_b32 exec_hi, 0")
    a(f"ds_write_b128 v{vPA}, v[{OCA}:{OCA+3}] offset:{LDS_OPART}")
    a("s_nop 6")
    a(f"ds_write_b128 v{vPA}, v[{OCB}:{OCB+3}] offset:{LDS_OPART+4096}")
    a("s_mov_b64 exec, -1")
    a(f"s_lshl_b32 s{sT1}, s{sH}, 1")
    a(f"s_add_u32 s{sT1}, s{sT1}, s{sBRT}")
    a(f"s_lshl_b32 s{sT1}, s{sT1}, 13")
    a(f"s_lshl_b32 s{sT2}, s{sRB}, 8")
    a(f"s_add_u32 s{sT1}, s{sT1}, s{sT2}")
    a(f"s_add_u32 s{sP1}, s{sT1}, {WS_R1}")
    a(f"s_lshl_b32 s{sT0}, s{sBRT}, 7")
    a(f"s_lshl_b32 s{sT1}, s{sH}, 2")
    a(f"s_add_u32 s{sT0}, s{sT0}, s{sT1}")
    a(f"s_add_u32 s{sT0}, s{sT0}, s{sRB}")
    a(f"s_mul_i32 s{sT0}, s{sT0}, {R2ROW}")
    a(f"s_lshl_b32 s{sT1}, s{sC}, 9")
    a(f"s_add_u32 s{sT0}, s{sT0}, s{sT1}")
    a(f"s_add_u32 s{sP2}, s{sT0}, {WS_R2}")
    a(f"s_sub_u32 s{sT2}, s{sW}, 5")
    a(f"s_lshl_b32 s{sT0}, s{sH}, 1")
    a(f"s_add_u32 s{sT0}, s{sT0}, s{sT2}")
    a(f"s_lshl_b32 s{sT0}, s{sT0}, 3")
    a(f"s_add_u32 s{sT0}, s{sT0}, s{sJ}")
    a(f"s_lshl_b32 s{sT0}, s{sT0}, 10")
    a(f"s_add_u32 s{sP0}, s{sT0}, {WS_R1}")
    a(f"s_lshl_b32 s{sT0}, s{sT2}, 12")
    a(f"v_lshlrev_b32 v{vT+4}, 3, v{vLane}")
    a(f"v_add_u32 v{vT+4}, s{sT0}, v{vT+4}")
    a("s_waitcnt lgkmcnt(0)")
    a("s_barrier")
    stamp(6)
    if 'e' in cfg.abl:
        a("s_waitcnt vmcnt(0)")
        stamp(9)
        a("s_branch L_fin")
    a(f"s_cmp_eq_u32 s{sPROJ}, 1")
    a("s_cbranch_scc1 L_proj")
    a(f"s_cmp_eq_u32 s{sW}, 4")
    a("s_cbranch_scc1 L_no_proj")
    OP = V
    for w in range(8):
        a(f"ds_read_b64 v[{OP+2*w}:{OP+2*w+1}], v{vT+4} offset:{LDS_OPART+512*w}")
    G = X + 4
    a(f"v_mov_b32 v{G+2}, v{LSE}")
    a(f"v_mov_b32 v{G+3}, s{sTAG}")
    a(f"v_mov_b32 v{vT+5}, 0")
    a(f"v_mov_b32 v{vT+6}, 1")
    for w in range(8):
        if w % 2 == 0:
            a(f"s_waitcnt lgkmcnt({6 - w})")
        if w == 0:
            a(f"v_mul_f32 v{G}, s{sWG}, v{OP}")
            a(f"v_mul_f32 v{G+1}, s{sWG}, v{OP+1}")
        else:
            a(f"v_fmac_f32 v{G}, s{sWG+w}, v{OP+2*w}")
            a(f"v_fmac_f32 v{G+1}, s{sWG+w}, v{OP+2*w+1}")
    a(f"s_cmp_eq_u32 s{sSAME}, 1")
    a("s_cbranch_scc1 L_pub1_fast")
    a(f"buffer_store_dwordx4 v[{G}:{G+3}], v{vLin}, s[{SRD_R}:{SRD_R+3}], s{sP0} offen sc1")
    a("s_branch L_pub1_done")
    a.label("L_pub1_fast")
    a(f"buffer_store_dwordx4 v[{G}:{G+3}], v{vLin}, s[{SRD_R}:{SRD_R+3}], s{sP0} offen")
    a.label("L_pub1_done")
    a("s_mov_b64 exec, 1")
    a(f"ds_add_u32 v{vT+5}, v{vT+6} offset:{LDS_CNT+16}")
    a("s_mov_b64 exec, -1")
    stamp(7)
    a("s_branch L_fin")
    a.label("L_proj")
    GR = V
    vP1 = vT + 3
    a(f"v_and_b32 v{vP1}, 7, v{vN}")
    a(f"v_lshlrev_b32 v{vP1}, 5, v{vP1}")
    a(f"v_lshrrev_b32 v{vT+4}, 1, v{vS}")
    a(f"v_lshl_add_u32 v{vP1}, v{vT+4}, 4, v{vP1}")
    TB = sMASK + 2
    a(f"s_lshr_b32 s{TB+1}, s{sTAG}, 8")
    a(f"s_lshr_b32 s{TB+2}, s{sTAG}, 16")
    a(f"s_lshr_b32 s{TB+3}, s{sTAG}, 24")
    a(f"s_mov_b32 s{sMASK}, 0xffff0000")
    a(f"s_mov_b32 s{sMASK+1}, 0xffff0000")
    a(f"v_mov_b32 v{vT+5}, 0xff")
    a(f"v_mov_b32 v{vT+4}, 0")
    a(f"s_mov_b32 s{sSPIN}, {cfg.spin_max}")
    a.label("L_cntpub")
    a(f"ds_read_b32 v{vT+6}, v{vT+4} offset:{LDS_CNT+16}")
    a("s_waitcnt lgkmcnt(0)")
    a(f"v_cmp_ne_u32 vcc, 2, v{vT+6}")
    a("s_cbranch_vccnz L_cntpub")
    a.label("L_poll1")
    a(f"s_mov_b32 s{sT3}, s{sP1}")
    for i in range(8):
        a(f"buffer_load_dwordx4 v[{GR+4*i}:{GR+4*i+3}], v{vP1}, s[{SRD_R}:{SRD_R+3}], s{sT3} offen sc1")
        if i < 7:
            a(f"s_add_u32 s{sT3}, s{sT3}, 1024")
    a("s_waitcnt vmcnt(0)")
    a(f"v_xor_b32 v{X}, s{sTAG}, v{GR+3}")
    for i in range(1, 8):
        a(f"v_xor_b32 v{X+1}, s{sTAG}, v{GR+4*i+3}")
        a(f"v_or_b32 v{X}, v{X}, v{X+1}")
    a(f"v_cmp_ne_u32 vcc, 0, v{X}")
    if 'h' in cfg.abl: a("s_branch L_poll1_done")
    a("s_cbranch_vccz L_poll1_done")
    a(f"s_sub_u32 s{sSPIN}, s{sSPIN}, 1")
    a(f"s_cmp_eq_u32 s{sSPIN}, 0")
    a("s_cbranch_scc0 L_poll1")
    a.label("L_poll1_done")
    stamp(17)
    MM = X + 2; G = X + 4
    a(f"v_max3_f32 v{MM}, v{GR+2}, v{GR+6}, v{GR+10}")
    a(f"v_max3_f32 v{MM}, v{MM}, v{GR+14}, v{GR+18}")
    a(f"v_max3_f32 v{MM}, v{MM}, v{GR+22}, v{GR+26}")
    a(f"v_max_f32 v{MM}, v{MM}, v{GR+30}")
    for i in range(8):
        a(f"v_sub_f32 v{GR+4*i+2}, v{GR+4*i+2}, v{MM}")
    for i in range(8):
        a(f"v_exp_f32 v{GR+4*i+2}, v{GR+4*i+2}")
    a("s_nop 0")
    a(f"v_mul_f32 v{G}, v{GR+2}, v{GR}")
    a(f"v_mul_f32 v{G+1}, v{GR+2}, v{GR+1}")
    a(f"v_mov_b32 v{G+2}, v{GR+2}")
    for i in range(1, 8):
        a(f"v_fmac_f32 v{G}, v{GR+4*i+2}, v{GR+4*i}")
        a(f"v_fmac_f32 v{G+1}, v{GR+4*i+2}, v{GR+4*i+1}")
        a(f"v_add_f32 v{G+2}, v{G+2}, v{GR+4*i+2}")
    a(f"v_rcp_f32 v{G+2}, v{G+2}")
    a(f"v_cndmask_b32_e64 v{G}, v{G}, v{G+1}, s[{sMASK}:{sMASK+1}]")
    a(f"v_mul_f32 v{G}, v{G}, v{G+2}")
    OPK = X + 8
    a(f"v_cvt_pk_bf16_f32 v{OPK}, v{G}, v{G}")
    a("s_nop 1")
    AO2 = [Q, Q + 4]; C0 = Q + 16
    ands(AO2[0], OPK, 0)
    for t in range(8):
        if t + 1 < 8:
            ands(AO2[(t+1) % 2], OPK, t + 1)
        else:
            a("s_nop 1")
        c = "0" if t == 0 else f"v[{C0}:{C0+3}]"
        a(f"v_mfma_f32_16x16x32_bf16 v[{C0}:{C0+3}], v[{AO2[t%2]}:{AO2[t%2]+3}], v[{WO+4*t}:{WO+4*t+3}], {c}")
    a("s_nop 7")
    PB = X + 4
    for r in range(4):
        src = sTAG if r == 0 else TB + r
        a(f"v_bfi_b32 v{PB+r}, v{vT+5}, s{src}, v{C0+r}")
    a("s_mov_b32 exec_hi, 0")
    a(f"buffer_store_dwordx4 v[{PB}:{PB+3}], v{vLin}, s[{SRD_R}:{SRD_R+3}], s{sP2} offen {cfg.st2}")
    a("s_mov_b64 exec, -1")
    stamp(10)
    a(f"s_cmp_eq_u32 s{sRED}, 0")
    a("s_cbranch_scc1 L_noE")
    if 'n' not in cfg.abl: a("s_barrier")
    a.label("L_noE")
    if cfg.stamps:
        a("s_waitcnt vmcnt(0)")
        stamp(19)
    a("s_branch L_fin")
    a.label("L_no_proj")
    a(f"s_cmp_lg_u32 s{sW}, 4")
    a("s_cbranch_scc1 L_fin")
    if 'n' in cfg.abl: a("s_branch L_fin")
    a(f"s_cmp_eq_u32 s{sRED}, 0")
    a("s_cbranch_scc1 L_fin")
    a(f"s_mov_b32 s{sT0}, s{sQG}")
    a(f"s_cmp_ge_u32 s{sT0}, 40")
    a(f"s_cselect_b32 s{sBRT}, 1, 0")
    a(f"s_mul_i32 s{sT1}, s{sBRT}, 40")
    a(f"s_sub_u32 s{sRB}, s{sT0}, s{sT1}")
    a(f"s_mul_i32 s{sT2}, s{sBRT}, {128*R2ROW}")
    a(f"s_lshl_b32 s{sT3}, s{sRB}, 6")
    a(f"s_add_u32 s{sT2}, s{sT2}, s{sT3}")
    a(f"s_add_u32 s{sT2}, s{sT2}, {WS_R2}")
    a(f"v_lshrrev_b32 v{vT+3}, 2, v{vLane}")
    a(f"v_mul_u32_u24 v{vT+3}, {R2ROW}, v{vT+3}")
    a(f"v_and_b32 v{vT+4}, 3, v{vLane}")
    a(f"v_lshl_add_u32 v{vT+3}, v{vT+4}, 4, v{vT+3}")
    SA = K; SB = K + 32; F = V
    MK = 52
    for k in range(8):
        a(f"s_mov_b64 s[{MK+2*k}:{MK+2*k+1}], -1")
    a(f"s_mov_b32 s{sPERM}, 0x0c0c0400")
    if cfg.stamps: a(f"s_mov_b32 s{sSTAMP+5}, 20")
    def loopstamp():
        if cfg.stamps:
            a(f"s_memrealtime s[{sSTAMP}:{sSTAMP+1}]")
            a("s_waitcnt lgkmcnt(0)")
            a(f"s_mov_b32 m0, s{sSTAMP+5}")
            a("s_nop 3")
            a(f"v_writelane_b32 v255, s{sSTAMP}, m0")
            a(f"s_add_u32 s{sSTAMP+5}, s{sSTAMP+5}, 1")
            a(f"s_min_u32 s{sSTAMP+5}, s{sSTAMP+5}, 31")
    def issue(S):
        a(f"s_mov_b32 s{sT3}, s{sT2}")
        for k in range(8):
            a(f"s_mov_b64 exec, s[{MK+2*k}:{MK+2*k+1}]")
            a(f"buffer_load_dwordx4 v[{S+4*k}:{S+4*k+3}], v{vT+3}, s[{SRD_R}:{SRD_R+3}], s{sT3} offen {cfg.ld2}")
            if k < 7:
                a(f"s_add_u32 s{sT3}, s{sT3}, {16*R2ROW}")
        a("s_mov_b64 exec, -1")
    mcount = [0]
    def merge(S):
        mcount[0] += 1
        for k in range(8):
            lbl = f"L_mg{mcount[0]}_{k}"
            a(f"s_cmp_eq_u64 s[{MK+2*k}:{MK+2*k+1}], 0")
            a(f"s_cbranch_scc1 {lbl}")
            a(f"v_perm_b32 v{X}, v{S+4*k+1}, v{S+4*k}, s{sPERM}")
            a(f"v_perm_b32 v{X+1}, v{S+4*k+3}, v{S+4*k+2}, s{sPERM}")
            a(f"v_lshl_or_b32 v{X}, v{X+1}, 16, v{X}")
            a(f"v_cmp_eq_u32 vcc, s{sTAG}, v{X}")
            a(f"s_and_b64 exec, vcc, s[{MK+2*k}:{MK+2*k+1}]")
            a(f"s_andn2_b64 s[{MK+2*k}:{MK+2*k+1}], s[{MK+2*k}:{MK+2*k+1}], vcc")
            for r in range(4):
                a(f"v_and_b32 v{F+4*k+r}, 0xffffff00, v{S+4*k+r}")
            a("s_mov_b64 exec, -1")
            a.label(lbl)
        a(f"s_or_b64 s[94:95], s[{MK}:{MK+1}], s[{MK+2}:{MK+3}]")
        for k in range(2, 8):
            a(f"s_or_b64 s[94:95], s[94:95], s[{MK+2*k}:{MK+2*k+1}]")
    a(f"s_not_b32 s{sT3}, s{sTAG}")
    for k in range(8):
        a(f"v_mov_b32 v{SA+4*k}, s{sT3}")
        a(f"v_mov_b32 v{SB+4*k}, s{sT3}")
    a(f"s_mul_i32 s{sP0}, s{sBRT}, 1280")
    a(f"s_lshr_b32 s{sT1}, s{sRB}, 3")
    a(f"s_lshl_b32 s{sT1}, s{sT1}, 8")
    a(f"s_add_u32 s{sP0}, s{sP0}, s{sT1}")
    a(f"s_and_b32 s{sT1}, s{sRB}, 3")
    a(f"s_lshl_b32 s{sT1}, s{sT1}, 6")
    a(f"s_add_u32 s{sP0}, s{sP0}, s{sT1}")
    a(f"s_bfe_u32 s{sT1}, s{sRB}, 0x10002")
    a(f"s_lshl_b32 s{sT1}, s{sT1}, 3")
    a(f"s_add_u32 s{sP0}, s{sP0}, s{sT1}")
    a(f"v_lshlrev_b32 v{vT+5}, 4, v{vLane}")
    a(f"s_mov_b32 s{SRD_OUT}, s36")
    a(f"s_mov_b32 s{SRD_OUT+1}, s37")
    a(f"s_mov_b32 s{SRD_OUT+2}, 2560")
    a(f"s_mov_b32 s{SRD_OUT+3}, 0x20000")
    a(f"s_mov_b32 s{sSPIN}, {cfg.spin_max}")
    a("s_barrier")
    issue(SB)
    a.label("L_poll2")
    issue(SA)
    a("s_waitcnt vmcnt(8)")
    loopstamp()
    merge(SB)
    a("s_cbranch_scc0 L_poll2_done")
    if cfg.sleep2: a(f"s_sleep {cfg.sleep2}")
    issue(SB)
    a("s_waitcnt vmcnt(8)")
    loopstamp()
    merge(SA)
    a("s_cbranch_scc0 L_poll2_done")
    if cfg.sleep2: a(f"s_sleep {cfg.sleep2}")
    a(f"s_sub_u32 s{sSPIN}, s{sSPIN}, 1")
    a(f"s_cmp_eq_u32 s{sSPIN}, 0")
    a("s_cbranch_scc0 L_poll2")
    a.label("L_poll2_done")
    if cfg.stamps:
        a(f"s_sub_u32 s{sSTAMP+4}, {cfg.spin_max}, s{sSPIN}")
        a(f"v_writelane_b32 v255, s{sSTAMP+4}, 14")
    stamp(10)
    for st in (16, 8, 4):
        for k in range(0, st, 2):
            a(f"v_pk_add_f32 v[{F+k}:{F+k+1}], v[{F+k}:{F+k+1}], v[{F+st+k}:{F+st+k+1}]")
    for rot in (4, 8):
        a("s_nop 0")
        for r in range(4):
            a(f"v_add_f32_dpp v{F+r}, v{F+r}, v{F+r} row_ror:{rot} row_mask:0xf bank_mask:0xf")
    for sw in ("v_permlane16_swap_b32", "v_permlane32_swap_b32"):
        for r in range(4):
            a(f"v_mov_b32 v{F+4+r}, v{F+r}")
        a("s_nop 0")
        for r in range(4):
            a(f"{sw} v{F+r}, v{F+4+r}")
        a("s_nop 0")
        a(f"v_pk_add_f32 v[{F}:{F+1}], v[{F}:{F+1}], v[{F+4}:{F+5}]")
        a(f"v_pk_add_f32 v[{F+2}:{F+3}], v[{F+2}:{F+3}], v[{F+6}:{F+7}]")
    a(f"v_cvt_pk_bf16_f32 v{F+8}, v{F}, v{F+1}")
    a(f"v_cvt_pk_bf16_f32 v{F+9}, v{F+2}, v{F+3}")
    a("s_mov_b64 exec, 0xf")
    a(f"buffer_store_dwordx2 v[{F+8}:{F+9}], v{vT+5}, s[{SRD_OUT}:{SRD_OUT+3}], s{sP0} offen")
    a("s_cmp_lg_u32 s2, 0")
    a("s_cbranch_scc1 L_fin2")
    a("s_mov_b64 exec, 1")
    a(f"v_mov_b32 v{vT+5}, 0")
    a(f"v_mov_b32 v{vT+6}, s{sTAG}")
    a(f"global_store_dword v{vT+5}, v{vT+6}, s[40:41] {cfg.stE}")
    a.label("L_fin2")
    a("s_mov_b64 exec, -1")
    a.label("L_fin")
    if cfg.stamps:
        stamp(11)
        a(f"s_getreg_b32 s{sT0}, hwreg(HW_REG_HW_ID)")
        a(f"s_getreg_b32 s{sT1}, hwreg(HW_REG_XCC_ID)")
        a(f"v_writelane_b32 v255, s{sT0}, 12")
        a(f"v_writelane_b32 v255, s{sT1}, 13")
        a(f"s_lshl_b32 s{sT0}, s2, 3")
        a(f"s_add_u32 s{sT0}, s{sT0}, s{sW}")
        a(f"s_lshl_b32 s{sT0}, s{sT0}, 7")
        a(f"s_add_u32 s{sT0}, s{sT0}, {WS_STAMP}")
        a(f"v_lshlrev_b32 v{vT}, 2, v{vLane}")
        a(f"v_add_u32 v{vT}, s{sT0}, v{vT}")
        a("s_mov_b32 exec_lo, -1")
        a("s_mov_b32 exec_hi, 0")
        a(f"global_store_dword v{vT}, v255, s[40:41]")
        a(f"v_add_u32 v{vT}, {1<<20}, v{vT}")
        a(f"global_store_dword v{vT}, v254, s[40:41]")
    a.label("L_end")
    a("s_endpgm")
    k = kernel_text(NAME + "_kernel", a.text(), 256, 102)
    open(path, "w").write(file_text([(NAME + "_kernel", 256, 512, LDS_BYTES)], [k]))

if __name__ == "__main__":
    cfg = Cfg()
    if "--stamps" in sys.argv: cfg.stamps = True
    if "--inter2" in sys.argv: cfg.pat = "inter2"
    if "--iwTj" in sys.argv: cfg.pat = "iwTj"
    if "--kp2" in sys.argv: cfg.kpart1 = 2
    if "--nofast" in sys.argv: cfg.fastpath = False
    if "--contig" in sys.argv: cfg.pat = "contig"
    if "--noprio" in sys.argv: cfg.prio = False
    if "--st0plain" in sys.argv: cfg.st0 = ""
    if "--nodbg0" in sys.argv: cfg.dbg0 = False
    for x in sys.argv:
        if x.startswith("--thr="): cfg.thr = int(x[6:])
    if "--warm" in sys.argv: cfg.warm = True
    for x in sys.argv:
        if x.startswith("--sleep2="): cfg.sleep2 = int(x[9:])
    for x in sys.argv:
        if x.startswith("--delay2="): cfg.delay2 = int(x[9:])
    for x in sys.argv:
        if x.startswith("--ld2="): cfg.ld2 = x[6:].replace("_", " ")
        if x.startswith("--st2="): cfg.st2 = x[6:].replace("_", " ")
    for x in sys.argv:
        if x.startswith("--abl="): cfg.abl = x[6:]
    for x in sys.argv:
        if x.startswith("--unthr="): cfg.unthr = int(x[8:])
    if "--nokfirst" in sys.argv: cfg.kfirst = False
    if "--woearly" in sys.argv: cfg.woearly = True
    if "--k0first" in sys.argv: cfg.k0first = True
    if "--yprio" in sys.argv: cfg.yprio = True
    if "--stEsc1" in sys.argv: cfg.stE = "sc1"
    for x in sys.argv:
        if x.startswith("--pad="): cfg.pad = int(x[6:])
    if "--redlow" in sys.argv: cfg.redeven = False
    for x in sys.argv:
        if x.startswith("--codepf="): cfg.codepf = int(x[9:])
    if "--dummy" in sys.argv: cfg.nodummy = False
    if "--wo0" in sys.argv: cfg.wopos = 0
    if "--wonothr" in sys.argv: cfg.wothr = False
    if "--nt" in sys.argv: cfg.fq = cfg.fk = cfg.fv = cfg.fo = "nt"
    gen(sys.argv[1], cfg)
```

```python
import sys
from asmgen import *

class Cfg:
    stamps = False
    fq = ""; fk = ""; fv = ""; fo = ""
    spin_max = 400000
    kpart1 = 1
    sleep0 = 1
    sleep1 = 0
    sleep2 = 0
    pat = "iwTj"
    fastpath = True
    pipe2 = True
    prio = True
    dbg0 = False
    thr = 3
    unthr = 3
    woearly = False
    wopos = 16
    wothr = True
    kfirst = False
    w7thr = None
    nodummy = True
    codepf = 0
    redeven = True
    stE = ''
    pad = 0
    yprio = False
    k0first = False
    fb_rounds = 16
    abl = ''
    ld2 = 'sc1'
    st2 = 'sc1'
    delay2 = 0
    dbgm = False
    warm = False
    qw = 7
    st0 = 'sc1'

sW = 3; sH = 4; sJ = 5
sT0, sT1, sT2, sT3 = 6, 7, 8, 9
sTAG = 10; sSPIN = 11; sRB = 12; sBRT = 13
sMA = 14; sLA = 15
sMB = 42; sLB = 43
SRD_X = 44; SRD_WQ = 48; SRD_KA = 52; SRD_VA = 56; SRD_KB = 60; SRD_VB = 64
SRD_WO = 44
SRD_R = 48
SRD_OUT = 68
sOFF = 72
sMASK = 76
sPERM = 84
sSAME = 85
sRED = 92
sQG = 93
sC = 90
sPROJ = 91
sP0 = 87
sP1 = 88
sP2 = 89
sXCC = 86
sSTAMP = 96

vLane = 0
vLin = 1; vKoff = 2; vWq = 3; vWo = 4
vMask = 5
vT = 9
vS = 10; vN = 11
K = 16; V = 96; Q = 176; C = 208; X = 228

LDS_QPART = 0
LDS_QHL = 4096; QHL_STRIDE = 288
LDS_ML = 5248
LDS_OPART = 5632
LDS_OHL = 13824
LDS_CNT = 14336
LDS_BYTES = 16384
WS_R0 = 4096
WS_R0S = 0x44000
WS_R1 = 0x90000
WS_R2 = 0x120000
R2ROW = 2560
WS_REC_BYTES = WS_R2 + 2*128*R2ROW
WS_STAMP = 4 << 20

def gen(path, cfg):
    a = Asm()
    def stamp(idx):
        if cfg.stamps:
            a(f"s_memrealtime s[{sSTAMP}:{sSTAMP+1}]")
            a("s_waitcnt lgkmcnt(0)")
            a(f"v_writelane_b32 v255, s{sSTAMP}, {idx}")
    def soff(T):
        return "0" if T == 0 else f"s{sOFF+T-1}"
    def ands(dst, src, bc):
        for k in range(4):
            a(f"v_and_b32_dpp v{dst+k}, v{src}, v{vMask+k} row_newbcast:{bc} row_mask:0xf bank_mask:0xf")
    def kvloads(reg, srdA, srdB, voff, T0, T1, fl):
        for T in range(T0, T1):
            for i in range(4):
                r = reg + 16*T + 4*i
                if T < 4:
                    a(f"buffer_load_dwordx4 v[{r}:{r+3}], v{voff}, s[{srdA}:{srdA+3}], {soff(T)} offen offset:{1024*i} {fl}")
                else:
                    a(f"buffer_load_dwordx4 v[{r}:{r+3}], v{voff}, s[{srdB}:{srdB+3}], 0 offen offset:{1024*i} {fl}")

    a("s_cmp_ge_u32 s2, 256")
    a("s_cbranch_scc1 L_end")
    if cfg.stamps:
        a(f"s_memrealtime s[{sSTAMP+2}:{sSTAMP+3}]")
    a("s_load_dwordx16 s[16:31], s[0:1], 0")
    for _ in range(cfg.pad): a("s_nop 0")
    a("s_load_dwordx4 s[32:35], s[0:1], 64")
    a("s_load_dwordx4 s[36:39], s[0:1], 80")
    a("s_load_dwordx2 s[40:41], s[0:1], 96")
    a(f"v_lshrrev_b32 v{vT}, 6, v0")
    a(f"v_and_b32 v{vLane}, 63, v0")
    a(f"v_readfirstlane_b32 s{sW}, v{vT}")
    a(f"s_and_b32 s{sH}, s2, 7")
    a(f"s_lshr_b32 s{sJ}, s2, 3")
    a(f"s_and_b32 s{sT0}, s{sJ}, 24")
    a(f"s_add_u32 s{sH}, s{sH}, s{sT0}")
    a(f"s_and_b32 s{sJ}, s{sJ}, 7")
    a(f"v_lshrrev_b32 v{vS}, 4, v{vLane}")
    a(f"v_and_b32 v{vN}, 15, v{vLane}")
    a(f"v_lshlrev_b32 v{vT+3}, 4, v{vN}")
    a(f"v_lshl_add_u32 v{vWq}, v{vS}, 13, v{vT+3}")
    a(f"v_lshlrev_b32 v{vT+4}, 3, v{vN}")
    a(f"v_lshl_add_u32 v{vT+4}, v{vS}, 1, v{vT+4}")
    a(f"v_lshrrev_b32 v{vT+5}, 2, v{vN}")
    a(f"v_and_b32 v{vT+6}, 3, v{vN}")
    a(f"v_lshlrev_b32 v{vKoff}, 8, v{vT+5}")
    a(f"v_lshl_add_u32 v{vKoff}, v{vS}, 6, v{vKoff}")
    a(f"v_lshl_add_u32 v{vKoff}, v{vT+6}, 4, v{vKoff}")
    a(f"s_and_b32 s{sRB}, s{sJ}, 3")
    a(f"s_lshr_b32 s{sBRT}, s{sJ}, 2")
    a(f"s_mul_i32 s{sT0}, s{sRB}, 160")
    a(f"s_mul_i32 s{sT1}, s{sW}, 20")
    a(f"s_add_u32 s{sT0}, s{sT0}, s{sT1}")
    a(f"s_lshl_b32 s{sT1}, s{sT0}, 13")
    a(f"s_lshl_b32 s{sT2}, s{sH}, 8")
    a(f"s_add_u32 s{sT1}, s{sT1}, s{sT2}")
    a(f"s_lshl_b32 s{sT2}, s{sT0}, 1")
    a(f"s_lshl_b32 s{sT0}, s{sH}, 20")
    a(f"s_lshl_b32 s{sP0}, s{sJ}, 17")
    a(f"s_lshl_b32 s{sT3}, s{sW}, 12")
    a(f"s_add_u32 s{sP0}, s{sP0}, s{sT3}")
    a(f"s_add_u32 s{sP0}, s{sP0}, s{sT0}")
    a(f"s_lshl_b32 s{sP1}, s{sW}, 3")
    a(f"s_add_u32 s{sP1}, s{sP1}, s{sJ}")
    a(f"s_lshl_b32 s{sP1}, s{sP1}, 12")
    a(f"s_add_u32 s{sP1}, s{sP1}, s{sT0}")
    a(f"s_add_u32 s{sP1}, s{sP1}, 786432")
    tstride = 32768
    asz = 3*tstride + 4096
    for t in range(1, 4):
        a(f"s_mov_b32 s{sOFF+t-1}, {tstride*t}")
    a(f"s_mov_b32 s{sP2}, {4*32768}")
    a(f"s_mov_b32 s{SRD_WQ+2}, {19*8192 + 256}")
    a(f"s_mov_b32 s{SRD_WQ+3}, 0x20000")
    a(f"s_sub_u32 s{SRD_X+2}, 1280, s{sT2}")
    a(f"s_mov_b32 s{SRD_X+3}, 0x20000")
    a(f"s_mov_b32 s{SRD_KA+2}, {asz}")
    a(f"s_mov_b32 s{SRD_KA+3}, 0x20000")
    a(f"s_cmp_eq_u32 s{sBRT}, 1")
    a("s_waitcnt lgkmcnt(0)")
    if cfg.stamps:
        a("v_mov_b32 v255, 0")
        a(f"v_writelane_b32 v255, s{sSTAMP+2}, 0")
    a("s_cselect_b64 s[16:17], s[26:27], s[16:17]")
    a("s_cselect_b64 s[22:23], s[32:33], s[22:23]")
    a("s_cselect_b64 s[24:25], s[34:35], s[24:25]")
    a(f"s_add_u32 s{SRD_X}, s16, s{sT2}")
    a(f"s_addc_u32 s{SRD_X+1}, s17, 0")
    a(f"s_add_u32 s{SRD_WQ}, s22, s{sT1}")
    a(f"s_addc_u32 s{SRD_WQ+1}, s23, 0")
    XR0 = X
    WQ = Q
    a(f"buffer_load_ushort v{XR0}, v{vT+4}, s[{SRD_X}:{SRD_X+3}], 0 offen")
    for t in range(5):
        so = "0" if t == 0 else (f"s{sOFF+t-1}" if t < 4 else f"s{sP2}")
        a(f"buffer_load_dwordx4 v[{WQ+4*t}:{WQ+4*t+3}], v{vWq}, s[{SRD_WQ}:{SRD_WQ+3}], {so} offen {cfg.fq}")
    a(f"s_add_u32 s{SRD_KA}, s18, s{sP0}")
    a(f"s_addc_u32 s{SRD_KA+1}, s19, 0")
    KP = cfg.kpart1
    if cfg.k0first:
        kvloads(K, SRD_KA, SRD_KB, vKoff, 0, KP, cfg.fk)
        stamp(1)
    if cfg.codepf:
        a(f"s_cmp_lg_u32 s{sW}, 3")
        a("s_cbranch_scc1 L_nopf")
        a("s_getpc_b64 s[94:95]")
        a(f"v_lshlrev_b32 v{vT}, 7, v{vLane}")
        a(f"global_load_dword v{X+20}, v{vT}, s[94:95]")
        if cfg.codepf > 1:
            a(f"v_add_u32 v{vT}, 8192, v{vT}")
            a("s_mov_b64 exec, 0xf")
            a(f"global_load_dword v{X+21}, v{vT}, s[94:95]")
            a("s_mov_b64 exec, -1")
        a.label("L_nopf")
    a(f"s_cmp_lg_u32 s{sW}, 0")
    a("s_cbranch_scc1 L_noinit")
    for k in range(4):
        a(f"v_mov_b32 v{X+4+k}, 0")
    a(f"v_mul_u32_u24 v{vT}, {QHL_STRIDE}, v{vLane}")
    a(f"v_mov_b32 v{vT+5}, 0")
    a("s_mov_b64 exec, 0xf")
    a(f"ds_write_b128 v{vT}, v[{X+4}:{X+7}] offset:{LDS_QHL+256}")
    a(f"ds_write_b128 v{vT+5}, v[{X+4}:{X+7}] offset:{LDS_CNT}")
    a(f"ds_write_b128 v{vT+5}, v[{X+4}:{X+7}] offset:{LDS_CNT+16}")
    a("s_mov_b64 exec, -1")
    a("s_waitcnt lgkmcnt(0)")
    a.label("L_noinit")
    a("s_barrier")
    if not cfg.k0first:
        kvloads(K, SRD_KA, SRD_KB, vKoff, 0, KP, cfg.fk)
        stamp(1)
    a(f"s_load_dword s{sTAG}, s[40:41], 0")
    a(f"s_getreg_b32 s{sXCC}, hwreg(HW_REG_XCC_ID)")
    if cfg.redeven:
        a(f"s_and_b32 s{sT0}, s2, 7")
        a(f"s_lshr_b32 s{sT1}, s2, 3")
        a(f"s_lshr_b32 s{sQG}, s{sT0}, 1")
        a(f"s_mul_i32 s{sQG}, s{sQG}, 20")
        a(f"s_add_u32 s{sQG}, s{sQG}, s{sT1}")
        a(f"s_cmp_lt_u32 s{sT1}, 20")
        a(f"s_cselect_b32 s{sRED}, 1, 0")
        a(f"s_bitcmp1_b32 s2, 0")
        a(f"s_cselect_b32 s{sRED}, 0, s{sRED}")
    else:
        a(f"s_and_b32 s{sQG}, s2, 7")
        a(f"s_mul_i32 s{sQG}, s{sQG}, 10")
        a(f"s_lshr_b32 s{sT1}, s2, 3")
        a(f"s_add_u32 s{sQG}, s{sQG}, s{sT1}")
        a("s_cmp_lt_u32 s2, 80")
        a(f"s_cselect_b32 s{sRED}, 1, 0")
    a(f"s_cmp_eq_u32 s{sW}, 7")
    a(f"s_cselect_b32 s{sC}, 4, s{sW}")
    a(f"s_cselect_b32 s{sPROJ}, 1, 0")
    a(f"s_cmp_lt_u32 s{sW}, 4")
    a(f"s_cselect_b32 s{sPROJ}, 1, s{sPROJ}")
    for srd, p, off, sz in ((SRD_VA, 20, sP0, asz), (SRD_KB, 28, sP1, 4096), (SRD_VB, 30, sP1, 4096)):
        a(f"s_add_u32 s{srd}, s{p}, s{off}")
        a(f"s_addc_u32 s{srd+1}, s{p+1}, 0")
        a(f"s_mov_b32 s{srd+2}, {sz}")
        a(f"s_mov_b32 s{srd+3}, 0x20000")
    a(f"v_lshlrev_b32 v{vLin}, 4, v{vLane}")
    a(f"v_mul_u32_u24 v{vWo}, 1280, v{vS}")
    a(f"v_add_u32 v{vWo}, v{vWo}, v{vT+3}")
    vQA = X + 23
    a(f"v_lshlrev_b32 v{vT+3}, 6, v{vS}")
    a(f"v_lshl_add_u32 v{vT+3}, v{vT+6}, 4, v{vT+3}")
    a(f"v_mov_b32 v{vT+4}, 256")
    for i in range(4):
        pat = 0x000f000f << (4*i)
        a(f"s_mov_b32 s{sMASK+2*i}, 0x{pat:08x}")
        a(f"s_mov_b32 s{sMASK+2*i+1}, 0x{pat:08x}")
    for i in range(4):
        a(f"v_cndmask_b32_e64 v{vQA+i}, v{vT+4}, v{vT+3}, s[{sMASK+2*i}:{sMASK+2*i+1}]")
    a(f"v_and_b32 v{vT+5}, 1, v{vLane}")
    a(f"v_lshlrev_b32 v{vT+5}, 4, v{vT+5}")
    a(f"v_mov_b32 v{vT+6}, 0xffff")
    a(f"v_lshlrev_b32 v{vT+5}, v{vT+5}, v{vT+6}")
    for k, pat in enumerate((0x03030303, 0x0c0c0c0c, 0x30303030, 0xc0c0c0c0)):
        a(f"s_mov_b32 s{sMASK+2*k}, 0x{pat:08x}")
        a(f"s_mov_b32 s{sMASK+2*k+1}, 0x{pat:08x}")
    for k in range(4):
        a(f"v_cndmask_b32_e64 v{vMask+k}, 0, v{vT+5}, s[{sMASK+2*k}:{sMASK+2*k+1}]")
    AOP = [C, C + 4]; QC = C + 8
    a(f"s_waitcnt vmcnt({5+4*KP})")
    a(f"v_lshl_or_b32 v{XR0}, v{XR0}, 16, v{XR0}")
    a("s_nop 1")
    ands(AOP[0], XR0, 0)
    for t in range(5):
        if t + 1 < 5:
            ands(AOP[(t+1) % 2], XR0, t+1)
        else:
            a("s_nop 1")
        a(f"s_waitcnt vmcnt({4*KP + 4 - t})")
        c = "0" if t == 0 else f"v[{QC}:{QC+3}]"
        a(f"v_mfma_f32_16x16x32_bf16 v[{QC}:{QC+3}], v[{AOP[t%2]}:{AOP[t%2]+3}], v[{WQ+4*t}:{WQ+4*t+3}], {c}")
    vPA = X + 22
    a(f"v_lshlrev_b32 v{vPA}, 5, v{vN}")
    a(f"v_lshl_add_u32 v{vPA}, v{vS}, 4, v{vPA}")
    a(f"s_lshl_b32 s{sT0}, s{sW}, 9")
    a(f"v_add_u32 v{vPA}, s{sT0}, v{vPA}")
    a(f"s_mov_b32 s{SRD_R}, s40")
    a(f"s_mov_b32 s{SRD_R+1}, s41")
    a(f"s_mov_b32 s{SRD_R+2}, {WS_REC_BYTES}")
    a(f"s_mov_b32 s{SRD_R+3}, 0x20000")
    a(f"v_mov_b32 v{vT+5}, 0")
    a(f"v_mov_b32 v{vT+6}, 1")
    a("s_mov_b32 exec_hi, 0")
    a("s_nop 0")
    a(f"ds_write_b128 v{vPA}, v[{QC}:{QC+3}] offset:{LDS_QPART}")
    a("s_mov_b64 exec, 1")
    a(f"ds_add_u32 v{vT+5}, v{vT+6} offset:{LDS_CNT}")
    a("s_mov_b64 exec, -1")
    a("s_waitcnt lgkmcnt(0)")
    a(f"s_add_u32 s{sTAG}, s{sTAG}, 1")
    stamp(2)
    a(f"s_cmp_lg_u32 s{sW}, {cfg.qw}")
    a("s_cbranch_scc1 L_bulk")
    if cfg.prio: a("s_setprio 3")
    if cfg.kfirst:
        kvloads(K, SRD_KA, SRD_KB, vKoff, KP, 5, cfg.fk)
    a.label("L_cntq")
    a(f"ds_read_b32 v{vT+6}, v{vT+5} offset:{LDS_CNT}")
    a("s_waitcnt lgkmcnt(0)")
    a(f"v_cmp_ne_u32 vcc, 8, v{vT+6}")
    a("s_cbranch_vccz L_cntq_done")
    a("s_sleep 1")
    a("s_branch L_cntq")
    a.label("L_cntq_done")
    QS = C
    a(f"v_lshlrev_b32 v{vT+3}, 3, v{vLane}")
    for w in range(8):
        a(f"ds_read_b64 v[{QS+2*w}:{QS+2*w+1}], v{vT+3} offset:{LDS_QPART+512*w}")
    a("s_waitcnt lgkmcnt(0)")
    for st in (8, 4, 2):
        for k in range(0, st, 2):
            a(f"v_add_f32 v{QS+k}, v{QS+k}, v{QS+st+k}")
            a(f"v_add_f32 v{QS+k+1}, v{QS+k+1}, v{QS+st+k+1}")
    G = X + 4
    a(f"v_mov_b32 v{G}, v{QS}")
    a(f"v_mov_b32 v{G+1}, v{QS+1}")
    a(f"v_mov_b32 v{G+2}, s{sXCC}")
    a(f"v_mov_b32 v{G+3}, s{sTAG}")
    a(f"s_lshl_b32 s{sT0}, s{sH}, 13")
    a(f"s_add_u32 s{sT0}, s{sT0}, {WS_R0}")
    a(f"s_lshl_b32 s{sT1}, s{sJ}, 10")
    a(f"s_add_u32 s{sT1}, s{sT1}, s{sT0}")
    stamp(16)
    if 'x' in cfg.abl:
        a("s_branch L_abl_flag")
    a(f"buffer_store_dwordx4 v[{G}:{G+3}], v{vLin}, s[{SRD_R}:{SRD_R+3}], s{sT1} offen")
    a(f"s_add_u32 s{sP0}, s{sT1}, {WS_R0S - WS_R0}")
    a(f"s_mov_b32 s{sP1}, 0")
    F = Q
    a(f"s_xor_b32 s{sT3}, s{sTAG}, 1")
    for k in range(8):
        a(f"v_mov_b32 v{F+4*k+3}, s{sT3}")
    a(f"s_mov_b32 s{sSPIN}, 0")
    a.label("L_poll0")
    a(f"s_mov_b32 s{sT3}, s{sT0}")
    a(f"s_cmp_lt_u32 s{sSPIN}, {cfg.fb_rounds}")
    a("s_cbranch_scc1 L_p0go")
    a(f"s_cmp_eq_u32 s{sP1}, 1")
    a("s_cbranch_scc1 L_p0alt")
    a(f"buffer_store_dwordx4 v[{G}:{G+3}], v{vLin}, s[{SRD_R}:{SRD_R+3}], s{sP0} offen sc1")
    a(f"s_mov_b32 s{sP1}, 1")
    a.label("L_p0alt")
    a(f"s_bitcmp1_b32 s{sSPIN}, 0")
    a("s_cbranch_scc0 L_p0go")
    a(f"s_add_u32 s{sT3}, s{sT3}, {WS_R0S - WS_R0}")
    a.label("L_p0go")
    for k in range(8):
        a(f"v_cmp_ne_u32 vcc, s{sTAG}, v{F+4*k+3}")
        a("s_mov_b64 exec, vcc")
        a(f"s_cbranch_execz L_p0skip{k}")
        a(f"buffer_load_dwordx4 v[{F+4*k}:{F+4*k+3}], v{vLin}, s[{SRD_R}:{SRD_R+3}], s{sT3} offen sc1")
        a.label(f"L_p0skip{k}")
        a("s_mov_b64 exec, -1")
        if k < 7:
            a(f"s_add_u32 s{sT3}, s{sT3}, 1024")
    a("s_waitcnt vmcnt(0)")
    a(f"v_xor_b32 v{vT+6}, s{sTAG}, v{F+3}")
    for k in range(1, 8):
        a(f"v_xor_b32 v{vT+4}, s{sTAG}, v{F+4*k+3}")
        a(f"v_or_b32 v{vT+6}, v{vT+6}, v{vT+4}")
    a(f"v_cmp_ne_u32 vcc, 0, v{vT+6}")
    a("s_cbranch_vccz L_poll0_done")
    a(f"s_add_u32 s{sSPIN}, s{sSPIN}, 1")
    a(f"s_cmp_lt_u32 s{sSPIN}, {cfg.spin_max}")
    a("s_cbranch_scc1 L_poll0")
    a.label("L_poll0_done")
    stamp(18)
    if cfg.stamps:
        a(f"v_writelane_b32 v255, s{sSPIN}, 14")
    a(f"v_xor_b32 v{vT+6}, s{sXCC}, v{F+2}")
    for k in range(1, 8):
        a(f"v_xor_b32 v{vT+4}, s{sXCC}, v{F+4*k+2}")
        a(f"v_or_b32 v{vT+6}, v{vT+6}, v{vT+4}")
    a(f"v_cmp_ne_u32 vcc, 0, v{vT+6}")
    a(f"s_cmp_eq_u64 vcc, 0")
    a(f"s_cselect_b32 s{sSAME}, 1, 0")
    a(f"s_or_b32 s{sT3}, s{sSAME}, s{sP1}")
    a(f"s_cmp_eq_u32 s{sT3}, 0")
    a("s_cbranch_scc0 L_p0noslow")
    a(f"buffer_store_dwordx4 v[{G}:{G+3}], v{vLin}, s[{SRD_R}:{SRD_R+3}], s{sP0} offen sc1")
    a.label("L_p0noslow")
    a(f"s_mov_b32 s{sT0}, 0x3e0293ee")
    a(f"s_mov_b32 s{sPERM}, 0x07060302")
    a(f"v_lshlrev_b32 v{vT+3}, 2, v{vLane}")
    for br in range(2):
        f = F + 16*br
        for e in (0, 1):
            a(f"v_add_f32 v{f+e}, v{f+e}, v{f+4+e}")
            a(f"v_add_f32 v{f+8+e}, v{f+8+e}, v{f+12+e}")
        for e in (0, 1):
            a(f"v_add_f32 v{f+e}, v{f+e}, v{f+8+e}")
        for e in (0, 1):
            a(f"v_mul_f32 v{f+e}, s{sT0}, v{f+e}")
        a(f"v_perm_b32 v{f+4}, v{f+1}, v{f}, s{sPERM}")
        a(f"v_and_b32 v{f+5}, 0xffff0000, v{f}")
        a(f"v_and_b32 v{f+6}, 0xffff0000, v{f+1}")
        a(f"v_sub_f32 v{f+5}, v{f}, v{f+5}")
        a(f"v_sub_f32 v{f+6}, v{f+1}, v{f+6}")
        a(f"v_cvt_pk_bf16_f32 v{f+5}, v{f+5}, v{f+6}")
        a(f"ds_write_b32 v{vT+3}, v{f+4} offset:{LDS_QHL + (2*br)*QHL_STRIDE}")
        a(f"ds_write_b32 v{vT+3}, v{f+5} offset:{LDS_QHL + (2*br+1)*QHL_STRIDE}")
    a.label("L_abl_flag")
    a(f"v_mov_b32 v{vT+5}, 1")
    a(f"v_mov_b32 v{vT+6}, s{sSAME}")
    a(f"v_mov_b32 v{vT+4}, 0")
    a("s_mov_b64 exec, 1")
    a(f"ds_write_b64 v{vT+4}, v[{vT+5}:{vT+6}] offset:{LDS_CNT+8}")
    a("s_mov_b64 exec, -1")
    if cfg.kfirst:
        if cfg.prio: a("s_setprio 0")
        a("s_branch L_afterK")
    a.label("L_bulk")
    if cfg.prio: a("s_setprio 0")
    def thr():
        a(f"s_waitcnt vmcnt({cfg.thr})")
    a(f"s_cmp_eq_u32 s{sW}, {cfg.qw}")
    for T in range(KP, 5):
        a(f"s_cbranch_scc1 L_nothr{T}")
        thr()
        a.label(f"L_nothr{T}")
        if cfg.w7thr is not None: a(f"s_waitcnt vmcnt({cfg.w7thr})")
        kvloads(K, SRD_KA, SRD_KB, vKoff, T, T + 1, cfg.fk)
    a.label("L_afterK")
    if cfg.yprio:
        a(f"s_cmp_ge_u32 s{sW}, 4")
        a("s_cbranch_scc0 L_noyp")
        a("s_setprio 1")
        a.label("L_noyp")
    stamp(3)
    thr()
    kvloads(V, SRD_VA, SRD_VB, vLin, 0, 1, cfg.fv)
    a(f"v_mov_b32 v{vT+4}, 0")
    a.label("L_flagq")
    a(f"ds_read_b64 v[{vT+5}:{vT+6}], v{vT+4} offset:{LDS_CNT+8}")
    a("s_waitcnt lgkmcnt(0)")
    a(f"v_cmp_ne_u32 vcc, 1, v{vT+5}")
    a("s_cbranch_vccz L_flagq_done")
    a("s_sleep 2")
    a("s_branch L_flagq")
    a.label("L_flagq_done")
    a(f"v_readfirstlane_b32 s{sSAME}, v{vT+6}")
    stamp(4)
    def consts(br):
        for i in range(4):
            a(f"ds_read_b128 v[{Q+8*i}:{Q+8*i+3}], v{vQA+i} offset:{LDS_QHL + (2*br)*QHL_STRIDE}")
            a(f"ds_read_b128 v[{Q+8*i+4}:{Q+8*i+7}], v{vQA+i} offset:{LDS_QHL + (2*br+1)*QHL_STRIDE}")
    def qk(T):
        c = C + 4*T
        for i in range(4):
            r = K + 16*T + 4*i
            cin = "0" if i == 0 else f"v[{c}:{c+3}]"
            if 'q' in cfg.abl: continue
            a(f"v_mfma_f32_16x16x32_bf16 v[{c}:{c+3}], v[{r}:{r+3}], v[{Q+8*i}:{Q+8*i+3}], {cin}")
            a(f"v_mfma_f32_16x16x32_bf16 v[{c}:{c+3}], v[{r}:{r+3}], v[{Q+8*i+4}:{Q+8*i+7}], v[{c}:{c+3}]")
    a(f"s_lshl_b32 s{sT1}, s{sH}, 7")
    a(f"s_lshl_b32 s{sT2}, s{sRB}, 5")
    a(f"s_add_u32 s{sT1}, s{sT1}, s{sT2}")
    a(f"s_mul_i32 s{sT1}, s{sT1}, 1280")
    a(f"s_lshl_b32 s{sT0}, s{sC}, 8")
    a(f"s_add_u32 s{sT0}, s{sT0}, s{sT1}")
    a(f"s_add_u32 s{SRD_WO}, s24, s{sT0}")
    a(f"s_addc_u32 s{SRD_WO+1}, s25, 0")
    a(f"s_cmp_eq_u32 s{sPROJ}, 1")
    a(f"s_cselect_b32 s{SRD_WO+2}, {31*1280 + 256}, 0")
    a(f"s_mov_b32 s{SRD_WO+3}, 0x20000")
    WO = K
    def woloads(t0, t1):
        for t in range(t0, t1):
            r = WO + 4*t
            so = "0"
            if t > 0:
                a(f"s_movk_i32 s{sT1}, {5120*t}" if 5120*t < 32768 else f"s_mov_b32 s{sT1}, {5120*t}")
                so = f"s{sT1}"
            a(f"buffer_load_dwordx4 v[{r}:{r+3}], v{vWo}, s[{SRD_WO}:{SRD_WO+3}], {so} offen {cfg.fo}")
    consts(0)
    a("s_waitcnt vmcnt(8) lgkmcnt(0)")
    for T in range(4):
        qk(T)
        if T == 3:
            consts(1)
        if T + 1 < cfg.unthr: thr()
        kvloads(V, SRD_VA, SRD_VB, vLin, T + 1, T + 2, cfg.fv)
    if cfg.woearly:
        woloads(0, 8)
        stamp(5)
        a(f"s_waitcnt vmcnt(24) lgkmcnt(0)")
    else:
        a(f"s_waitcnt vmcnt(16) lgkmcnt(0)")
    qk(4)
    a(f"s_mov_b32 s{sMASK}, 0xaaaaaaaa"); a(f"s_mov_b32 s{sMASK+1}, 0xaaaaaaaa")
    a(f"s_mov_b32 s{sMASK+2}, 0xcccccccc"); a(f"s_mov_b32 s{sMASK+3}, 0xcccccccc")
    T0 = X; T1 = X + 5; SC = X + 10; PK = X + 15; MX = X + 20
    for T in range(5):
        c = C + 4*T
        a(f"v_cndmask_b32_e64 v{T0+T}, v{c}, v{c+1}, s[{sMASK}:{sMASK+1}]")
        a(f"v_cndmask_b32_e64 v{T1+T}, v{c+2}, v{c+3}, s[{sMASK}:{sMASK+1}]")
    for T in range(5):
        a(f"v_cndmask_b32_e64 v{SC+T}, v{T0+T}, v{T1+T}, s[{sMASK+2}:{sMASK+3}]")
    for T in range(5):
        a(f"v_add_f32_dpp v{SC+T}, v{SC+T}, v{SC+T} quad_perm:[1,0,3,2] row_mask:0xf bank_mask:0xf")
    for T in range(5):
        a(f"v_add_f32_dpp v{SC+T}, v{SC+T}, v{SC+T} quad_perm:[2,3,0,1] row_mask:0xf bank_mask:0xf")
    a(f"v_max3_f32 v{MX}, v{SC}, v{SC+1}, v{SC+2}")
    a(f"v_mov_b32 v{MX+1}, v{SC+4}")
    a(f"v_max_f32 v{MX}, v{MX}, v{SC+3}")
    def wave_reduce2(op, r0, r1, s0, s1):
        for mod in ("row_ror:4 row_mask:0xf", "row_ror:8 row_mask:0xf", "row_bcast:15 row_mask:0xa", "row_bcast:31 row_mask:0xc"):
            a("s_nop 0")
            a(f"{op}_dpp v{r1}, v{r1}, v{r1} {mod} bank_mask:0xf")
            a(f"{op}_dpp v{r0}, v{r0}, v{r0} {mod} bank_mask:0xf")
        a(f"v_readlane_b32 s{s1}, v{r1}, 63")
        a(f"v_readlane_b32 s{s0}, v{r0}, 63")
        a("s_nop 1")
    a("s_nop 0")
    wave_reduce2("v_max_f32", MX, MX + 1, sMA, sMB)
    for T in range(5):
        a(f"v_subrev_f32 v{SC+T}, s{sMA if T < 4 else sMB}, v{SC+T}")
    for T in range(5):
        a(f"v_exp_f32 v{SC+T}, v{SC+T}")
    a("s_nop 0")
    for T in range(5):
        a(f"v_cvt_pk_bf16_f32 v{PK+T}, v{SC+T}, v{SC+T}")
    for T in range(5):
        a(f"v_and_b32 v{SC+T}, 0xffff0000, v{PK+T}")
    a(f"v_add_f32 v{SC}, v{SC}, v{SC+1}")
    a(f"v_add_f32 v{SC+2}, v{SC+2}, v{SC+3}")
    a(f"v_add_f32 v{SC}, v{SC}, v{SC+2}")
    a("s_nop 0")
    wave_reduce2("v_add_f32", SC, SC + 4, sLA, sLB)
    a(f"s_lshl_b32 s{sT0}, s{sW}, 3")
    a(f"v_mov_b32 v{vT+6}, s{sT0}")
    a(f"v_mov_b32 v{X}, s{sMA}")
    a(f"v_mov_b32 v{X+1}, s{sLA}")
    a(f"v_mov_b32 v{X+2}, s{sMB}")
    a(f"v_mov_b32 v{X+3}, s{sLB}")
    a(f"v_mov_b32 v{vT+4}, 0")
    a(f"v_mov_b32 v{vT+5}, 1")
    a("s_mov_b64 exec, 1")
    a(f"ds_write_b64 v{vT+6}, v[{X}:{X+1}] offset:{LDS_ML}")
    a(f"ds_write_b64 v{vT+6}, v[{X+2}:{X+3}] offset:{LDS_ML+64}")
    a(f"ds_add_u32 v{vT+4}, v{vT+5} offset:{LDS_CNT+4}")
    a("s_mov_b64 exec, -1")
    AO = [Q, Q + 4]; OCA = Q + 8; OCB = Q + 12
    sWG = 52
    LSE = X + 8
    def early_weights():
        a(f"s_cmp_lt_u32 s{sW}, 5")
        a("s_cbranch_scc1 L_noew")
        a(f"s_cmp_eq_u32 s{sW}, 7")
        a("s_cbranch_scc1 L_noew")
        a(f"v_mov_b32 v{vT+4}, 0")
        a.label("L_cntml")
        a(f"ds_read_b32 v{vT+5}, v{vT+4} offset:{LDS_CNT+4}")
        a("s_waitcnt lgkmcnt(0)")
        a(f"v_cmp_ne_u32 vcc, 8, v{vT+5}")
        a("s_cbranch_vccz L_cntml_done")
        a("s_sleep 1")
        a("s_branch L_cntml")
        a.label("L_cntml_done")
        a(f"s_sub_u32 s{sT2}, s{sW}, 5")
        a(f"s_lshl_b32 s{sT0}, s{sT2}, 6")
        a(f"v_and_b32 v{vT+4}, 7, v{vLane}")
        a(f"v_lshlrev_b32 v{vT+4}, 3, v{vT+4}")
        a(f"v_add_u32 v{vT+4}, s{sT0}, v{vT+4}")
        EM = X + 4; EL = X + 5; ET = X + 6; EU = X + 7
        a(f"ds_read_b64 v[{EM}:{EL}], v{vT+4} offset:{LDS_ML}")
        a("s_waitcnt lgkmcnt(0)")
        a(f"v_mov_b32 v{ET}, v{EM}")
        for mod in ("quad_perm:[1,0,3,2]", "quad_perm:[2,3,0,1]", "row_half_mirror"):
            a("s_nop 1")
            a(f"v_max_f32_dpp v{ET}, v{ET}, v{ET} {mod} row_mask:0xf bank_mask:0xf")
        a(f"v_sub_f32 v{EM}, v{EM}, v{ET}")
        a(f"v_exp_f32 v{EM}, v{EM}")
        a("s_nop 0")
        a(f"v_mul_f32 v{EU}, v{EM}, v{EL}")
        for mod in ("quad_perm:[1,0,3,2]", "quad_perm:[2,3,0,1]", "row_half_mirror"):
            a("s_nop 1")
            a(f"v_add_f32_dpp v{EU}, v{EU}, v{EU} {mod} row_mask:0xf bank_mask:0xf")
        a(f"v_rcp_f32 v{EL}, v{EU}")
        a(f"v_log_f32 v{LSE}, v{EU}")
        a("s_nop 0")
        a(f"v_mul_f32 v{EM}, v{EM}, v{EL}")
        a(f"v_add_f32 v{LSE}, v{LSE}, v{ET}")
        a("s_nop 0")
        for w in range(8):
            a(f"v_readlane_b32 s{sWG+w}, v{EM}, {w}")
        a.label("L_noew")
    steps = [(T, t) for T in range(5) for t in range(4)]
    ands(AO[0], PK + 0, 0)
    for idx, (T, t) in enumerate(steps):
        if idx + 1 < len(steps):
            T2, t2 = steps[idx+1]
            ands(AO[(idx+1) % 2], PK + T2, 4*t2)
        else:
            a("s_nop 1")
        if idx == 0:
            if cfg.wopos == 0 and not cfg.woearly:
                woloads(0, 8)
                stamp(5)
            a(f"s_waitcnt vmcnt({12 if (cfg.woearly or cfg.wopos == 0) else 4})")
        if idx == 16:
            if not cfg.woearly and cfg.wopos == 16 and not cfg.wothr:
                woloads(0, 8)
                stamp(5)
            early_weights()
            if not cfg.woearly and cfg.wopos == 16 and cfg.wothr and cfg.nodummy:
                a(f"s_cmp_eq_u32 s{sPROJ}, 0")
                a("s_cbranch_scc1 L_nowo")
                thr()
                woloads(0, 8)
                a("s_waitcnt vmcnt(8)")
                a("s_branch L_wodone")
                a.label("L_nowo")
                a("s_waitcnt vmcnt(0)")
                a.label("L_wodone")
                stamp(5)
            else:
                if not cfg.woearly and cfg.wopos == 16 and cfg.wothr:
                    thr()
                    woloads(0, 8)
                    stamp(5)
                a("s_waitcnt vmcnt(8)")
        r = V + 16*T + 4*t
        oc = OCA if T < 4 else OCB
        c = "0" if idx in (0, 16) else f"v[{oc}:{oc+3}]"
        a(f"v_mfma_f32_16x16x32_bf16 v[{oc}:{oc+3}], v[{AO[idx%2]}:{AO[idx%2]+3}], v[{r}:{r+3}], {c}")
    a("s_mov_b32 exec_hi, 0")
    a(f"ds_write_b128 v{vPA}, v[{OCA}:{OCA+3}] offset:{LDS_OPART}")
    a("s_nop 6")
    a(f"ds_write_b128 v{vPA}, v[{OCB}:{OCB+3}] offset:{LDS_OPART+4096}")
    a("s_mov_b64 exec, -1")
    a(f"s_lshl_b32 s{sT1}, s{sH}, 1")
    a(f"s_add_u32 s{sT1}, s{sT1}, s{sBRT}")
    a(f"s_lshl_b32 s{sT1}, s{sT1}, 13")
    a(f"s_lshl_b32 s{sT2}, s{sRB}, 8")
    a(f"s_add_u32 s{sT1}, s{sT1}, s{sT2}")
    a(f"s_add_u32 s{sP1}, s{sT1}, {WS_R1}")
    a(f"s_lshl_b32 s{sT0}, s{sBRT}, 7")
    a(f"s_lshl_b32 s{sT1}, s{sH}, 2")
    a(f"s_add_u32 s{sT0}, s{sT0}, s{sT1}")
    a(f"s_add_u32 s{sT0}, s{sT0}, s{sRB}")
    a(f"s_mul_i32 s{sT0}, s{sT0}, {R2ROW}")
    a(f"s_lshl_b32 s{sT1}, s{sC}, 9")
    a(f"s_add_u32 s{sT0}, s{sT0}, s{sT1}")
    a(f"s_add_u32 s{sP2}, s{sT0}, {WS_R2}")
    a(f"s_sub_u32 s{sT2}, s{sW}, 5")
    a(f"s_lshl_b32 s{sT0}, s{sH}, 1")
    a(f"s_add_u32 s{sT0}, s{sT0}, s{sT2}")
    a(f"s_lshl_b32 s{sT0}, s{sT0}, 3")
    a(f"s_add_u32 s{sT0}, s{sT0}, s{sJ}")
    a(f"s_lshl_b32 s{sT0}, s{sT0}, 10")
    a(f"s_add_u32 s{sP0}, s{sT0}, {WS_R1}")
    a(f"s_lshl_b32 s{sT0}, s{sT2}, 12")
    a(f"v_lshlrev_b32 v{vT+4}, 3, v{vLane}")
    a(f"v_add_u32 v{vT+4}, s{sT0}, v{vT+4}")
    a("s_waitcnt lgkmcnt(0)")
    a("s_barrier")
    stamp(6)
    if 'e' in cfg.abl:
        a("s_waitcnt vmcnt(0)")
        stamp(9)
        a("s_branch L_fin")
    a(f"s_cmp_eq_u32 s{sPROJ}, 1")
    a("s_cbranch_scc1 L_proj")
    a(f"s_cmp_eq_u32 s{sW}, 4")
    a("s_cbranch_scc1 L_no_proj")
    OP = V
    for w in range(8):
        a(f"ds_read_b64 v[{OP+2*w}:{OP+2*w+1}], v{vT+4} offset:{LDS_OPART+512*w}")
    G = X + 4
    a(f"v_mov_b32 v{G+2}, v{LSE}")
    a(f"v_mov_b32 v{G+3}, s{sTAG}")
    a(f"v_mov_b32 v{vT+5}, 0")
    a(f"v_mov_b32 v{vT+6}, 1")
    for w in range(8):
        if w % 2 == 0:
            a(f"s_waitcnt lgkmcnt({6 - w})")
        if w == 0:
            a(f"v_mul_f32 v{G}, s{sWG}, v{OP}")
            a(f"v_mul_f32 v{G+1}, s{sWG}, v{OP+1}")
        else:
            a(f"v_fmac_f32 v{G}, s{sWG+w}, v{OP+2*w}")
            a(f"v_fmac_f32 v{G+1}, s{sWG+w}, v{OP+2*w+1}")
    a(f"s_cmp_eq_u32 s{sSAME}, 1")
    a("s_cbranch_scc1 L_pub1_fast")
    a(f"buffer_store_dwordx4 v[{G}:{G+3}], v{vLin}, s[{SRD_R}:{SRD_R+3}], s{sP0} offen sc1")
    a("s_branch L_pub1_done")
    a.label("L_pub1_fast")
    a(f"buffer_store_dwordx4 v[{G}:{G+3}], v{vLin}, s[{SRD_R}:{SRD_R+3}], s{sP0} offen")
    a.label("L_pub1_done")
    a("s_mov_b64 exec, 1")
    a(f"ds_add_u32 v{vT+5}, v{vT+6} offset:{LDS_CNT+16}")
    a("s_mov_b64 exec, -1")
    stamp(7)
    a("s_branch L_fin")
    a.label("L_proj")
    GR = V
    vP1 = vT + 3
    a(f"v_and_b32 v{vP1}, 7, v{vN}")
    a(f"v_lshlrev_b32 v{vP1}, 5, v{vP1}")
    a(f"v_lshrrev_b32 v{vT+4}, 1, v{vS}")
    a(f"v_lshl_add_u32 v{vP1}, v{vT+4}, 4, v{vP1}")
    TB = sMASK + 2
    a(f"s_lshr_b32 s{TB+1}, s{sTAG}, 8")
    a(f"s_lshr_b32 s{TB+2}, s{sTAG}, 16")
    a(f"s_lshr_b32 s{TB+3}, s{sTAG}, 24")
    a(f"s_mov_b32 s{sMASK}, 0xffff0000")
    a(f"s_mov_b32 s{sMASK+1}, 0xffff0000")
    a(f"v_mov_b32 v{vT+5}, 0xff")
    a(f"v_mov_b32 v{vT+4}, 0")
    a(f"s_mov_b32 s{sSPIN}, {cfg.spin_max}")
    a.label("L_cntpub")
    a(f"ds_read_b32 v{vT+6}, v{vT+4} offset:{LDS_CNT+16}")
    a("s_waitcnt lgkmcnt(0)")
    a(f"v_cmp_ne_u32 vcc, 2, v{vT+6}")
    a("s_cbranch_vccnz L_cntpub")
    a.label("L_poll1")
    a(f"s_mov_b32 s{sT3}, s{sP1}")
    for i in range(8):
        a(f"buffer_load_dwordx4 v[{GR+4*i}:{GR+4*i+3}], v{vP1}, s[{SRD_R}:{SRD_R+3}], s{sT3} offen sc1")
        if i < 7:
            a(f"s_add_u32 s{sT3}, s{sT3}, 1024")
    a("s_waitcnt vmcnt(0)")
    a(f"v_xor_b32 v{X}, s{sTAG}, v{GR+3}")
    for i in range(1, 8):
        a(f"v_xor_b32 v{X+1}, s{sTAG}, v{GR+4*i+3}")
        a(f"v_or_b32 v{X}, v{X}, v{X+1}")
    a(f"v_cmp_ne_u32 vcc, 0, v{X}")
    if 'h' in cfg.abl: a("s_branch L_poll1_done")
    a("s_cbranch_vccz L_poll1_done")
    a(f"s_sub_u32 s{sSPIN}, s{sSPIN}, 1")
    a(f"s_cmp_eq_u32 s{sSPIN}, 0")
    a("s_cbranch_scc0 L_poll1")
    a.label("L_poll1_done")
    stamp(17)
    MM = X + 2; G = X + 4
    a(f"v_max3_f32 v{MM}, v{GR+2}, v{GR+6}, v{GR+10}")
    a(f"v_max3_f32 v{MM}, v{MM}, v{GR+14}, v{GR+18}")
    a(f"v_max3_f32 v{MM}, v{MM}, v{GR+22}, v{GR+26}")
    a(f"v_max_f32 v{MM}, v{MM}, v{GR+30}")
    for i in range(8):
        a(f"v_sub_f32 v{GR+4*i+2}, v{GR+4*i+2}, v{MM}")
    for i in range(8):
        a(f"v_exp_f32 v{GR+4*i+2}, v{GR+4*i+2}")
    a("s_nop 0")
    a(f"v_mul_f32 v{G}, v{GR+2}, v{GR}")
    a(f"v_mul_f32 v{G+1}, v{GR+2}, v{GR+1}")
    a(f"v_mov_b32 v{G+2}, v{GR+2}")
    for i in range(1, 8):
        a(f"v_fmac_f32 v{G}, v{GR+4*i+2}, v{GR+4*i}")
        a(f"v_fmac_f32 v{G+1}, v{GR+4*i+2}, v{GR+4*i+1}")
        a(f"v_add_f32 v{G+2}, v{G+2}, v{GR+4*i+2}")
    a(f"v_rcp_f32 v{G+2}, v{G+2}")
    a(f"v_cndmask_b32_e64 v{G}, v{G}, v{G+1}, s[{sMASK}:{sMASK+1}]")
    a(f"v_mul_f32 v{G}, v{G}, v{G+2}")
    OPK = X + 8
    a(f"v_cvt_pk_bf16_f32 v{OPK}, v{G}, v{G}")
    a("s_nop 1")
    AO2 = [Q, Q + 4]; C0 = Q + 16
    ands(AO2[0], OPK, 0)
    for t in range(8):
        if t + 1 < 8:
            ands(AO2[(t+1) % 2], OPK, t + 1)
        else:
            a("s_nop 1")
        c = "0" if t == 0 else f"v[{C0}:{C0+3}]"
        a(f"v_mfma_f32_16x16x32_bf16 v[{C0}:{C0+3}], v[{AO2[t%2]}:{AO2[t%2]+3}], v[{WO+4*t}:{WO+4*t+3}], {c}")
    a("s_nop 7")
    PB = X + 4
    for r in range(4):
        src = sTAG if r == 0 else TB + r
        a(f"v_bfi_b32 v{PB+r}, v{vT+5}, s{src}, v{C0+r}")
    a("s_mov_b32 exec_hi, 0")
    a(f"buffer_store_dwordx4 v[{PB}:{PB+3}], v{vLin}, s[{SRD_R}:{SRD_R+3}], s{sP2} offen {cfg.st2}")
    a("s_mov_b64 exec, -1")
    stamp(10)
    a(f"s_cmp_eq_u32 s{sRED}, 0")
    a("s_cbranch_scc1 L_noE")
    if 'n' not in cfg.abl: a("s_barrier")
    a.label("L_noE")
    if cfg.stamps:
        a("s_waitcnt vmcnt(0)")
        stamp(19)
    a("s_branch L_fin")
    a.label("L_no_proj")
    a(f"s_cmp_lg_u32 s{sW}, 4")
    a("s_cbranch_scc1 L_fin")
    if 'n' in cfg.abl: a("s_branch L_fin")
    a(f"s_cmp_eq_u32 s{sRED}, 0")
    a("s_cbranch_scc1 L_fin")
    a(f"s_mov_b32 s{sT0}, s{sQG}")
    a(f"s_cmp_ge_u32 s{sT0}, 40")
    a(f"s_cselect_b32 s{sBRT}, 1, 0")
    a(f"s_mul_i32 s{sT1}, s{sBRT}, 40")
    a(f"s_sub_u32 s{sRB}, s{sT0}, s{sT1}")
    a(f"s_mul_i32 s{sT2}, s{sBRT}, {128*R2ROW}")
    a(f"s_lshl_b32 s{sT3}, s{sRB}, 6")
    a(f"s_add_u32 s{sT2}, s{sT2}, s{sT3}")
    a(f"s_add_u32 s{sT2}, s{sT2}, {WS_R2}")
    a(f"v_lshrrev_b32 v{vT+3}, 2, v{vLane}")
    a(f"v_mul_u32_u24 v{vT+3}, {R2ROW}, v{vT+3}")
    a(f"v_and_b32 v{vT+4}, 3, v{vLane}")
    a(f"v_lshl_add_u32 v{vT+3}, v{vT+4}, 4, v{vT+3}")
    SA = K; SB = K + 32; F = V
    MK = 52
    for k in range(8):
        a(f"s_mov_b64 s[{MK+2*k}:{MK+2*k+1}], -1")
    a(f"s_mov_b32 s{sPERM}, 0x0c0c0400")
    if cfg.stamps: a(f"s_mov_b32 s{sSTAMP+5}, 20")
    def loopstamp():
        if cfg.stamps:
            a(f"s_memrealtime s[{sSTAMP}:{sSTAMP+1}]")
            a("s_waitcnt lgkmcnt(0)")
            a(f"s_mov_b32 m0, s{sSTAMP+5}")
            a("s_nop 3")
            a(f"v_writelane_b32 v255, s{sSTAMP}, m0")
            a(f"s_add_u32 s{sSTAMP+5}, s{sSTAMP+5}, 1")
            a(f"s_min_u32 s{sSTAMP+5}, s{sSTAMP+5}, 31")
    def issue(S):
        a(f"s_mov_b32 s{sT3}, s{sT2}")
        for k in range(8):
            a(f"s_mov_b64 exec, s[{MK+2*k}:{MK+2*k+1}]")
            a(f"buffer_load_dwordx4 v[{S+4*k}:{S+4*k+3}], v{vT+3}, s[{SRD_R}:{SRD_R+3}], s{sT3} offen {cfg.ld2}")
            if k < 7:
                a(f"s_add_u32 s{sT3}, s{sT3}, {16*R2ROW}")
        a("s_mov_b64 exec, -1")
    mcount = [0]
    def merge(S):
        mcount[0] += 1
        for k in range(8):
            lbl = f"L_mg{mcount[0]}_{k}"
            a(f"s_cmp_eq_u64 s[{MK+2*k}:{MK+2*k+1}], 0")
            a(f"s_cbranch_scc1 {lbl}")
            a(f"v_perm_b32 v{X}, v{S+4*k+1}, v{S+4*k}, s{sPERM}")
            a(f"v_perm_b32 v{X+1}, v{S+4*k+3}, v{S+4*k+2}, s{sPERM}")
            a(f"v_lshl_or_b32 v{X}, v{X+1}, 16, v{X}")
            a(f"v_cmp_eq_u32 vcc, s{sTAG}, v{X}")
            a(f"s_and_b64 exec, vcc, s[{MK+2*k}:{MK+2*k+1}]")
            a(f"s_andn2_b64 s[{MK+2*k}:{MK+2*k+1}], s[{MK+2*k}:{MK+2*k+1}], vcc")
            for r in range(4):
                a(f"v_and_b32 v{F+4*k+r}, 0xffffff00, v{S+4*k+r}")
            a("s_mov_b64 exec, -1")
            a.label(lbl)
        a(f"s_or_b64 s[94:95], s[{MK}:{MK+1}], s[{MK+2}:{MK+3}]")
        for k in range(2, 8):
            a(f"s_or_b64 s[94:95], s[94:95], s[{MK+2*k}:{MK+2*k+1}]")
    a(f"s_not_b32 s{sT3}, s{sTAG}")
    for k in range(8):
        a(f"v_mov_b32 v{SA+4*k}, s{sT3}")
        a(f"v_mov_b32 v{SB+4*k}, s{sT3}")
    a(f"s_mul_i32 s{sP0}, s{sBRT}, 1280")
    a(f"s_lshr_b32 s{sT1}, s{sRB}, 3")
    a(f"s_lshl_b32 s{sT1}, s{sT1}, 8")
    a(f"s_add_u32 s{sP0}, s{sP0}, s{sT1}")
    a(f"s_and_b32 s{sT1}, s{sRB}, 3")
    a(f"s_lshl_b32 s{sT1}, s{sT1}, 6")
    a(f"s_add_u32 s{sP0}, s{sP0}, s{sT1}")
    a(f"s_bfe_u32 s{sT1}, s{sRB}, 0x10002")
    a(f"s_lshl_b32 s{sT1}, s{sT1}, 3")
    a(f"s_add_u32 s{sP0}, s{sP0}, s{sT1}")
    a(f"v_lshlrev_b32 v{vT+5}, 4, v{vLane}")
    a(f"s_mov_b32 s{SRD_OUT}, s36")
    a(f"s_mov_b32 s{SRD_OUT+1}, s37")
    a(f"s_mov_b32 s{SRD_OUT+2}, 2560")
    a(f"s_mov_b32 s{SRD_OUT+3}, 0x20000")
    a(f"s_mov_b32 s{sSPIN}, {cfg.spin_max}")
    a("s_barrier")
    issue(SB)
    a.label("L_poll2")
    issue(SA)
    a("s_waitcnt vmcnt(8)")
    loopstamp()
    merge(SB)
    a("s_cbranch_scc0 L_poll2_done")
    if cfg.sleep2: a(f"s_sleep {cfg.sleep2}")
    issue(SB)
    a("s_waitcnt vmcnt(8)")
    loopstamp()
    merge(SA)
    a("s_cbranch_scc0 L_poll2_done")
    if cfg.sleep2: a(f"s_sleep {cfg.sleep2}")
    a(f"s_sub_u32 s{sSPIN}, s{sSPIN}, 1")
    a(f"s_cmp_eq_u32 s{sSPIN}, 0")
    a("s_cbranch_scc0 L_poll2")
    a.label("L_poll2_done")
    if cfg.stamps:
        a(f"s_sub_u32 s{sSTAMP+4}, {cfg.spin_max}, s{sSPIN}")
        a(f"v_writelane_b32 v255, s{sSTAMP+4}, 14")
    stamp(10)
    for st in (16, 8, 4):
        for k in range(0, st, 2):
            a(f"v_pk_add_f32 v[{F+k}:{F+k+1}], v[{F+k}:{F+k+1}], v[{F+st+k}:{F+st+k+1}]")
    for rot in (4, 8):
        a("s_nop 0")
        for r in range(4):
            a(f"v_add_f32_dpp v{F+r}, v{F+r}, v{F+r} row_ror:{rot} row_mask:0xf bank_mask:0xf")
    for sw in ("v_permlane16_swap_b32", "v_permlane32_swap_b32"):
        for r in range(4):
            a(f"v_mov_b32 v{F+4+r}, v{F+r}")
        a("s_nop 0")
        for r in range(4):
            a(f"{sw} v{F+r}, v{F+4+r}")
        a("s_nop 0")
        a(f"v_pk_add_f32 v[{F}:{F+1}], v[{F}:{F+1}], v[{F+4}:{F+5}]")
        a(f"v_pk_add_f32 v[{F+2}:{F+3}], v[{F+2}:{F+3}], v[{F+6}:{F+7}]")
    a(f"v_cvt_pk_bf16_f32 v{F+8}, v{F}, v{F+1}")
    a(f"v_cvt_pk_bf16_f32 v{F+9}, v{F+2}, v{F+3}")
    a("s_mov_b64 exec, 0xf")
    a(f"buffer_store_dwordx2 v[{F+8}:{F+9}], v{vT+5}, s[{SRD_OUT}:{SRD_OUT+3}], s{sP0} offen")
    a("s_cmp_lg_u32 s2, 0")
    a("s_cbranch_scc1 L_fin2")
    a("s_mov_b64 exec, 1")
    a(f"v_mov_b32 v{vT+5}, 0")
    a(f"v_mov_b32 v{vT+6}, s{sTAG}")
    a(f"global_store_dword v{vT+5}, v{vT+6}, s[40:41] {cfg.stE}")
    a.label("L_fin2")
    a("s_mov_b64 exec, -1")
    a.label("L_fin")
    if cfg.stamps:
        stamp(11)
        a(f"s_getreg_b32 s{sT0}, hwreg(HW_REG_HW_ID)")
        a(f"s_getreg_b32 s{sT1}, hwreg(HW_REG_XCC_ID)")
        a(f"v_writelane_b32 v255, s{sT0}, 12")
        a(f"v_writelane_b32 v255, s{sT1}, 13")
        a(f"s_lshl_b32 s{sT0}, s2, 3")
        a(f"s_add_u32 s{sT0}, s{sT0}, s{sW}")
        a(f"s_lshl_b32 s{sT0}, s{sT0}, 7")
        a(f"s_add_u32 s{sT0}, s{sT0}, {WS_STAMP}")
        a(f"v_lshlrev_b32 v{vT}, 2, v{vLane}")
        a(f"v_add_u32 v{vT}, s{sT0}, v{vT}")
        a("s_mov_b32 exec_lo, -1")
        a("s_mov_b32 exec_hi, 0")
        a(f"global_store_dword v{vT}, v255, s[40:41]")
        a(f"v_add_u32 v{vT}, {1<<20}, v{vT}")
        a(f"global_store_dword v{vT}, v254, s[40:41]")
    a.label("L_end")
    a("s_endpgm")
    k = kernel_text(NAME + "_kernel", a.text(), 256, 102)
    open(path, "w").write(file_text([(NAME + "_kernel", 256, 512, LDS_BYTES)], [k]))

if __name__ == "__main__":
    cfg = Cfg()
    if "--stamps" in sys.argv: cfg.stamps = True
    if "--inter2" in sys.argv: cfg.pat = "inter2"
    if "--iwTj" in sys.argv: cfg.pat = "iwTj"
    if "--kp2" in sys.argv: cfg.kpart1 = 2
    if "--nofast" in sys.argv: cfg.fastpath = False
    if "--contig" in sys.argv: cfg.pat = "contig"
    if "--noprio" in sys.argv: cfg.prio = False
    if "--st0plain" in sys.argv: cfg.st0 = ""
    if "--nodbg0" in sys.argv: cfg.dbg0 = False
    for x in sys.argv:
        if x.startswith("--thr="): cfg.thr = int(x[6:])
    if "--warm" in sys.argv: cfg.warm = True
    for x in sys.argv:
        if x.startswith("--sleep2="): cfg.sleep2 = int(x[9:])
    for x in sys.argv:
        if x.startswith("--delay2="): cfg.delay2 = int(x[9:])
    for x in sys.argv:
        if x.startswith("--ld2="): cfg.ld2 = x[6:].replace("_", " ")
        if x.startswith("--st2="): cfg.st2 = x[6:].replace("_", " ")
    for x in sys.argv:
        if x.startswith("--abl="): cfg.abl = x[6:]
    for x in sys.argv:
        if x.startswith("--unthr="): cfg.unthr = int(x[8:])
    if "--nokfirst" in sys.argv: cfg.kfirst = False
    if "--woearly" in sys.argv: cfg.woearly = True
    if "--k0first" in sys.argv: cfg.k0first = True
    if "--yprio" in sys.argv: cfg.yprio = True
    if "--stEsc1" in sys.argv: cfg.stE = "sc1"
    for x in sys.argv:
        if x.startswith("--pad="): cfg.pad = int(x[6:])
    if "--redlow" in sys.argv: cfg.redeven = False
    for x in sys.argv:
        if x.startswith("--codepf="): cfg.codepf = int(x[9:])
    if "--dummy" in sys.argv: cfg.nodummy = False
    if "--kfirst" in sys.argv: cfg.kfirst = True
    for x in sys.argv:
        if x.startswith("--w7thr="): cfg.w7thr = int(x[8:])
    if "--wo0" in sys.argv: cfg.wopos = 0
    if "--wonothr" in sys.argv: cfg.wothr = False
    if "--nt" in sys.argv: cfg.fq = cfg.fk = cfg.fv = cfg.fo = "nt"
    gen(sys.argv[1], cfg)
```

```python
import gen14, asmgen
doc = """; ---------------------------------------------------------------------------------------------
; ---------------------------------------------------------------------------------------------
"""
gen14.file_text.__globals__["HEADER"] = asmgen.HEADER + doc
cfg = gen14.Cfg()
cfg.fq = cfg.fk = cfg.fv = cfg.fo = "nt"
cfg.thr = 2; cfg.unthr = 9; cfg.yprio = True; cfg.w7thr = 8
gen14.gen("concat_heads__gqa_block_cached__sliding_block_cached__decode.s", cfg)
```
